```python
import torch

def _softmax(x, axis=-1):
    return torch.softmax(x, dim=axis)
def _gelu(x):
    return torch.nn.functional.gelu(x, approximate="tanh")
def _silu(x):
    return torch.nn.functional.silu(x)
def _sigmoid(x):
    return torch.sigmoid(x)
def _layernorm(x, axis=-1, eps=1e-5):
    m = x.mean(dim=axis, keepdim=True)
    v = x.var(dim=axis, keepdim=True, unbiased=False)
    return (x - m) / torch.sqrt(v + eps)
def _scatter_add(tgt, idx, src, axis=0):
    return tgt.clone().index_add_(axis, idx, src)
def _segment_sum(src, seg, n):
    out = torch.zeros((n,) + src.shape[1:], dtype=src.dtype)
    return out.index_add_(0, seg, src)
def _pad(x, pw):
    flat = tuple(v for pair in reversed(pw) for v in pair)
    return torch.nn.functional.pad(x, flat)

kernel_name = 'parallel_sum__mha_block__geglu_ffn__prompt'

def setup_inputs():

    _w = (lambda a: (lambda t: t.to(torch.bfloat16) if t.is_floating_point() else t)(torch.as_tensor(a)))
    def _A_setup():
        B, S, D, H = 1, 2048, 448, 16
        return {
            "x": _w((lambda *s: torch.randn(*s, dtype=torch.bfloat16) * 0.05)(B, S, D)),
            "wqkv": _w((lambda *s: torch.randn(*s, dtype=torch.bfloat16) * 0.2)(D, 3 * D)),
            "wo": _w((lambda *s: torch.randn(*s, dtype=torch.bfloat16) * 0.1)(D, D)),
        }
    _A_in = _A_setup()

    def _B_setup():
        B, S, D, F = 1, 2048, 448, 1792
        return {
            "x": _w((lambda *s: torch.randn(*s, dtype=torch.bfloat16) * 0.05)(B, S, D)),
            "w_gate": _w((lambda *s: torch.randn(*s, dtype=torch.bfloat16) * 0.1)(D, F)),
            "w_up": _w((lambda *s: torch.randn(*s, dtype=torch.bfloat16) * 0.1)(D, F)),
            "w_down": _w((lambda *s: torch.randn(*s, dtype=torch.bfloat16) * 0.1)(F, D)),
        }
    _B_in = _B_setup()

    return {
        "A_x": _A_in["x"],
        "A_wqkv": _A_in["wqkv"],
        "A_wo": _A_in["wo"],
        "B_x": _B_in["x"],
        "B_w_gate": _B_in["w_gate"],
        "B_w_up": _B_in["w_up"],
        "B_w_down": _B_in["w_down"],
    }

def reference(A_x, A_wqkv, A_wo, B_x, B_w_gate, B_w_up, B_w_down):
    def _A_ref(x, wqkv, wo):
        B, S, D = x.shape
        H = 16
        Dh = D // H
        qkv = (lambda x, *d: x.permute(*d))((x @ wqkv).reshape(B, S, 3, H, Dh), 2, 0, 3, 1, 4)
        q, k, v = qkv[0], qkv[1], qkv[2]
        scores = torch.einsum("bhqd,bhkd->bhqk", q, k) * (Dh ** -0.5)
        p = _softmax(scores, axis=-1)
        o = torch.einsum("bhqk,bhkd->bhqd", p, v)
        return (lambda x, *d: x.permute(*d))(o, 0, 2, 1, 3).reshape(B, S, D) @ wo

    def _B_ref(x, w_gate, w_up, w_down):
        return (_gelu(x @ w_gate) * (x @ w_up)) @ w_down

    x = A_x
    xn = _layernorm(x, axis=-1)
    return x + _A_ref(xn, A_wqkv, A_wo) + _B_ref(xn, B_w_gate, B_w_up, B_w_down)
```

```python
import re, struct

def f2u(x):
    return struct.unpack("<I", struct.pack("<f", x))[0]

class K:
    def __init__(self, name):
        self.name = name
        self.lines = []
        self.vm = []
        self.lg = []
    def e(self, s):
        for ln in s.split("\n"):
            ln = ln.strip()
            if ln:
                self.lines.append("    " + ln)
    def c(self, s):
        self.lines.append("    ; " + s)
    def label(self, l):
        self.lines.append(l + ":")
    def vmem(self, s, tag=None):
        self.e(s); self.vm.append(tag)
        assert len(self.vm) <= 63, "vmcnt overflow %d" % len(self.vm)
    def ds(self, s, tag=None):
        self.e(s); self.lg.append(tag)
    def _cnt(self, q, tag):
        idx = [i for i, t in enumerate(q) if t == tag]
        if not idx:
            return None
        return len(q) - 1 - idx[-1]
    def wait_vm(self, tag):
        n = self._cnt(self.vm, tag)
        if n is None: return
        self.e(f"s_waitcnt vmcnt({n})")
        self.vm = self.vm[len(self.vm) - n:] if n else []
    def wait_lg(self, tag):
        n = self._cnt(self.lg, tag)
        if n is None: return
        assert n <= 15, "lgkmcnt too large %d" % n
        self.e(f"s_waitcnt lgkmcnt({n})")
        self.lg = self.lg[len(self.lg) - n:] if n else []
    def wait_lg0(self):
        self.e("s_waitcnt lgkmcnt(0)"); self.lg = []
    def wait_vm0(self):
        self.e("s_waitcnt vmcnt(0)"); self.vm = []
    def text(self):
        return "\n".join(self.lines)

def vr(b, n=1, p="v"):
    return f"{p}{b}" if n == 1 else f"{p}[{b}:{b+n-1}]"
def ar(b, n=1):
    return vr(b, n, "a")
def sr(b, n=1):
    return vr(b, n, "s")

def kernel_text(k, vgpr, agpr=0, sgpr=102):
    acc = ((vgpr + 3) // 4) * 4
    nfv = acc + agpr if agpr else vgpr
    body = f""".globl {k.name}
.p2align 8
.type {k.name},@function
{k.name}:
{k.text()}
"""
    desc = f""".p2align 6
.amdhsa_kernel {k.name}
  .amdhsa_next_free_vgpr {nfv}
  .amdhsa_next_free_sgpr {sgpr}
  .amdhsa_accum_offset {acc}
  .amdhsa_group_segment_fixed_size 0
  .amdhsa_kernarg_size 80
  .amdhsa_user_sgpr_count 2
  .amdhsa_user_sgpr_kernarg_segment_ptr 1
  .amdhsa_system_sgpr_workgroup_id_x 1
.end_amdhsa_kernel
"""
    return body, desc
```

```python
import re, sys

TRANS = ("v_exp_f32", "v_log_f32", "v_rcp_f32", "v_rsq_f32", "v_sqrt_f32", "v_sin_f32", "v_cos_f32", "v_rcp_iflag_f32")
REG = re.compile(r"^(-|abs\(|neg\()?([vas])(\d+)\)?$")
RNG = re.compile(r"^(-)?([vas])\[(\d+):(\d+)\]$")

def regs(op):
    op = op.strip()
    if op in ("vcc",): return {("s", "vcc")}
    if op in ("vcc_lo", "vcc_hi"): return {("s", "vcc")}
    if op in ("exec", "exec_lo", "exec_hi"): return {("s", "exec")}
    if op == "m0": return {("s", "m0")}
    m = REG.match(op)
    if m: return {(m.group(2), int(m.group(3)))}
    m = RNG.match(op)
    if m: return {(m.group(2), i) for i in range(int(m.group(3)), int(m.group(4)) + 1)}
    return set()

class I:
    def __init__(self, text, ln):
        self.text = text; self.ln = ln
        parts = text.split(None, 1)
        self.op = parts[0]
        rest = parts[1] if len(parts) > 1 else ""
        ops, cur, depth = [], "", 0
        for ch in rest:
            if ch == "[": depth += 1
            if ch == "]": depth -= 1
            if ch == "," and depth == 0:
                ops.append(cur.strip()); cur = ""
            else: cur += ch
        if cur.strip(): ops.append(cur.strip())
        self.mods = ""
        if ops:
            sp = ops[-1].split(None, 1)
            ops[-1] = sp[0]
            self.mods = sp[1] if len(sp) > 1 else ""
        self.ops = ops
        op = self.op
        self.w = set(); self.r = set()
        self.cls = "other"
        self.ws = 1
        self.A = self.B = self.C = set()
        self.passes = 0
        R = lambda i: regs(ops[i]) if i < len(ops) else set()
        if op == "s_nop":
            self.ws = int(ops[0], 0) + 1; self.cls = "salu"
        elif op.startswith("v_mfma"):
            self.cls = "mfma"
            self.w = R(0); self.A = R(1); self.B = R(2); self.C = R(3); self.r = self.A | self.B | self.C
            self.passes = 8 if "32x32x16" in op else 4
        elif op.startswith("v_"):
            self.cls = "valu"
            base = op.replace("_e32", "").replace("_e64", "")
            self.base = base
            if base.startswith("v_cmp"):
                self.w = R(0); self.r = R(1) | R(2)
                if base.startswith("v_cmpx"): self.w |= {("s", "exec")}
            elif base in ("v_add_co_u32", "v_sub_co_u32", "v_addc_co_u32", "v_subb_co_u32"):
                self.w = R(0) | R(1); self.r = set().union(*[R(i) for i in range(2, len(ops))])
            elif base.startswith("v_permlane") and "swap" in base:
                self.w = R(0) | R(1); self.r = R(0) | R(1)
            else:
                self.w = R(0); self.r = set().union(*[R(i) for i in range(1, len(ops))]) if len(ops) > 1 else set()
                if base in ("v_fmac_f32", "v_dot2c_f32_bf16", "v_pk_fmac_f16", "v_writelane_b32"): self.r |= R(0)
            self.trans = base in TRANS
            self.dot = base.startswith("v_dot")
            self.dpp = "row_" in self.mods or "quad_perm" in self.mods or "wave_" in self.mods
        elif op.startswith("ds_"):
            self.cls = "ds"
            if op.startswith("ds_read") or op.startswith("ds_bpermute") or op.startswith("ds_swizzle") or op.startswith("ds_permute"):
                self.w = R(0); self.r = set().union(*[R(i) for i in range(1, len(ops))])
            else:
                self.r = set().union(*[R(i) for i in range(len(ops))])
        elif op.startswith("buffer_") or op.startswith("global_"):
            self.cls = "vmem"
            self.lds = " lds" in (" " + self.mods) or "_lds_" in op
            if "load" in op and not self.lds:
                self.w = R(0); self.r = set().union(*[R(i) for i in range(1, len(ops))])
            else:
                self.r = set().union(*[R(i) for i in range(len(ops))])
                if "atomic" in op and "sc0" in self.mods: self.w = R(0)
            if self.lds: self.r |= {("s", "m0")}
            self.wide_store = ("store" in op and ("x3" in op or "x4" in op))
            if self.wide_store:
                self.sdata = R(0) if op.startswith("buffer_") else R(1)
        elif op.startswith("s_"):
            self.cls = "salu"
            if op.startswith("s_cmp") or op.startswith("s_cbranch") or op in ("s_branch", "s_barrier", "s_waitcnt", "s_endpgm", "s_setprio", "s_sleep", "s_setpc_b64"):
                self.r = set().union(*[R(i) for i in range(len(ops))]) if ops else set()
            else:
                self.w = R(0); self.r = set().union(*[R(i) for i in range(1, len(ops))]) if len(ops) > 1 else set()
                if "saveexec" in op: self.w |= {("s", "exec")}

def isv(s): return {x for x in s if x[0] in "va"}
def iss(s): return {x for x in s if x[0] == "s"}

def need(p, c):
    n, why = 0, ""
    def up(k, w):
        nonlocal n, why
        if k > n: n, why = k, w
    if p.cls == "valu":
        pv = isv(p.w); ps = iss(p.w)
        if c.cls == "mfma" and pv & c.r: up(2 if not p.dot else 3, "valu->mfma")
        if c.cls == "mfma" and ("s", "exec") in ps: up(4, "valu exec->mfma")
        if c.cls == "valu":
            if p.trans and not c.trans and pv & c.r: up(1, "trans->valu")
            if p.dot and (pv & (c.r | c.w)):
                same = (c.base == p.base)
                if same:
                    cc = regs(c.ops[3]) if len(c.ops) > 3 else regs(c.ops[0])
                    ab = regs(c.ops[1]) | regs(c.ops[2])
                    if pv & ab: up(3, "dot->dot A/B")
                else: up(3, "dot->other")
            if ps & c.r: up(2, "valu sgpr->valu read")
            if c.base in ("v_readfirstlane_b32", "v_readlane_b32") and pv & c.r: up(1, "valu->readlane")
            if c.base.startswith("v_permlane") and pv & c.r: up(2, "valu->permlane")
            if c.dpp and pv & c.r: up(2, "valu->dpp")
            if ("s", "exec") in ps and (c.base in ("v_readfirstlane_b32", "v_readlane_b32") or c.base.startswith("v_permlane")): up(4, "exec->readlane")
            if "op_sel" in p.mods and not p.base.startswith("v_pk_") and pv & (c.r | c.w): up(1, "opsel")
        if p.dot and c.cls in ("vmem", "ds") and pv & c.r: up(3, "dot->mem")
        if c.cls == "vmem" and ps & c.r: up(5, "valu sgpr->vmem")
    if p.cls == "mfma":
        P = p.passes
        big = {8: 12, 4: 8}[P]; ovl = {8: 10, 4: 6}[P]; war = {8: 7, 4: 3}[P]
        if c.cls == "mfma":
            if p.w & (c.A | c.B): up(big, "mfma D->A/B")
            if p.w & c.C and not (p.w == c.C and p.passes == c.passes): up(ovl, "mfma D->C overlap")
            if p.w & c.w and not (p.w == c.w): up(ovl, "mfma WAW partial")
        elif c.cls == "valu":
            if p.w & (c.r | c.w): up(big, "mfma D->valu")
            if p.C & c.w: up(war, "mfma C WAR")
        elif c.cls in ("vmem", "ds"):
            if p.w & (c.r | c.w): up(big, "mfma D->mem")
    if p.cls == "salu" and ("s", "m0") in p.w and c.cls == "vmem" and c.lds: up(1, "m0->lds dma")
    if p.cls == "vmem" and p.wide_store:
        if c.cls == "valu" and p.sdata & c.w: up(2, "store data WAR")
        elif p.sdata & c.w: up(1, "store data WAR")
    return n, why

def check(text, verbose=True):
    ins, labels = [], {}
    for ln, line in enumerate(text.split("\n"), 1):
        line = line.split(";")[0].strip()
        if not line or line.startswith("."): continue
        if line.endswith(":"):
            labels[line[:-1]] = len(ins); continue
        ins.append(I(line, ln))
    n = len(ins)
    preds = [[] for _ in range(n + 1)]
    calls = [i for i, x in enumerate(ins) if x.op == "s_call_b64"]
    for i, x in enumerate(ins):
        if x.op == "s_endpgm": continue
        if x.op == "s_branch":
            preds[labels[x.ops[0]]].append(i); continue
        if x.op == "s_call_b64":
            preds[labels[x.ops[1]]].append(i); continue
        if x.op == "s_setpc_b64":
            for cI in calls: preds[cI + 1].append(i)
            continue
        if x.op.startswith("s_cbranch"):
            preds[labels[x.ops[0]]].append(i)
        preds[i + 1].append(i)
    bad = []
    for ci, c in enumerate(ins):
        if c.cls in ("salu", "other") and not c.w: continue
        stack = [(p, 0) for p in preds[ci]]
        seen = {}
        while stack:
            pi, d = stack.pop()
            if seen.get(pi, 99) <= d: continue
            seen[pi] = d
            p = ins[pi]
            k, why = need(p, c)
            if k > d:
                bad.append((p, c, k, d, why))
            d2 = d + p.ws
            if d2 < 13:
                stack += [(q, d2) for q in preds[pi]]
    if verbose:
        for p, c, k, d, why in bad[:40]:
            print(f"HAZARD {why}: need {k} have {d}\n   L{p.ln}: {p.text}\n   L{c.ln}: {c.text}")
        print(f"hazard check: {len(bad)} problems, {n} instructions")
    return bad

if __name__ == "__main__":
    check(open(sys.argv[1]).read())
```

```python
import math, sys
from asmlib import *
import hazard

QF = 0
HF = 0x600000
WDF = 0xD00000
WOF = 0xE88000
OF = 0x1000000
PART = 0x1200000
WS_SIZE = 0x1600000
SRD3 = "0x00020000"
CQ = math.log2(math.e) / math.sqrt(28.0)
GK1 = -2.0 * math.log2(math.e) * math.sqrt(2.0 / math.pi)
GK2 = GK1 * 0.044715
MFMA = "v_mfma_f32_32x32x16_bf16"

def srd(k, d, lo, hi, size):
    k.e(f"s_mov_b32 s{d}, {lo}\ns_mov_b32 s{d+1}, {hi}\ns_mov_b32 s{d+2}, {size}\ns_mov_b32 s{d+3}, {SRD3}")

def gen_k1():
    k = K("k1_kernel")
    sX, sG, sU, sQ, sWS, sT = 24, 28, 32, 36, 40, 44
    CG, RB, W = 50, 51, 53
    X0, ACC0 = 32, 144
    AACC, AW = 0, 48
    NW = 8
    VADDR = 16
    vG, vU, vQ, vL16 = 26, 27, 28, 29
    STG = 20480
    NSLOT = 7
    k.e("s_cmp_ge_u32 s2, 256\ns_cbranch_scc1 L1_end")
    k.e("s_load_dwordx16 s[4:19], s[0:1], 0\ns_load_dwordx2 s[20:21], s[0:1], 72")
    k.e(f"""s_and_b32 s{CG}, s2, 7
    s_lshr_b32 s{RB}, s2, 3
    s_and_b32 s52, s{RB}, 1
    s_lshl_b32 s{CG}, s{CG}, 1
    s_add_u32 s{CG}, s{CG}, s52
    s_lshr_b32 s{RB}, s{RB}, 1
    v_lshrrev_b32 v1, 6, v0
    v_and_b32 v2, 63, v0
    v_readfirstlane_b32 s{W}, v1
    v_and_b32 v3, 31, v2
    v_lshrrev_b32 v4, 5, v2""")
    k.e(f"""s_lshl_b32 s54, s{RB}, 2
    s_add_u32 s54, s54, s{W}
    s_lshl_b32 s55, s54, 5
    v_add_u32 v5, s55, v3
    v_mul_u32_u24 v5, 896, v5
    v_lshl_add_u32 v5, v4, 4, v5
    v_lshlrev_b32 v{vL16}, 4, v2""")
    k.e(f"""s_sub_u32 s56, s{RB}, 14
    s_cmp_lt_u32 s{RB}, 14
    s_cselect_b32 s56, s{RB}, s56
    s_lshl_b32 s57, s56, 6""")
    k.e(f"""s_sub_u32 s65, s{CG}, 14
    s_mul_i32 s65, s65, 560
    s_add_u32 s65, s65, 1568
    s_add_u32 s66, s65, 256
    s_add_u32 s67, s65, 448
    s_lshl_b32 s68, s{CG}, 8
    s_mul_i32 s69, s{CG}, 112
    s_cmp_lt_u32 s{CG}, 14
    s_movk_i32 s58, 2688
    s_cselect_b32 s58, 3584, s58
    s_cselect_b32 s59, s68, s65
    s_cselect_b32 s60, s68, s66
    s_cselect_b32 s61, s69, s67
    s_cselect_b32 s62, 32, 56
    s_cselect_b32 s63, 256, 32
    s_cselect_b32 s64, 1, 0""")
    k.e("s_waitcnt lgkmcnt(0)")
    srd(k, sX, "s4", "s5", 1835008)
    for i in range(14):
        k.vmem(f"buffer_load_dwordx4 {vr(X0+8*i,4)}, v5, s[{sX}:{sX+3}], s57 offen", "x")
        k.vmem(f"buffer_load_dwordx4 {vr(X0+8*i+4,4)}, v5, s[{sX}:{sX+3}], s57 offen offset:32", "x")
        if i < 13:
            k.e("s_add_u32 s57, s57, 64\ns_cmp_eq_u32 s57, 896\ns_cselect_b32 s57, 0, s57")
    k.e(f"""s_cmp_lt_u32 s{CG}, 14
    s_cselect_b32 s{sG}, s12, s6
    s_cselect_b32 s{sG+1}, s13, s7
    s_mov_b32 s{sG+2}, 1204224
    s_cselect_b32 s{sG+2}, 1605632, s{sG+2}
    s_mov_b32 s{sG+3}, {SRD3}
    s_cselect_b32 s{sU}, s14, s6
    s_cselect_b32 s{sU+1}, s15, s7
    s_mov_b32 s{sU+2}, s{sG+2}
    s_mov_b32 s{sU+3}, {SRD3}""")
    srd(k, sQ, "s6", "s7", 1204224)
    srd(k, sWS, "s20", "s21", WS_SIZE)
    k.e(f"""s_lshl_b32 s65, s{W}, 3
    v_lshrrev_b32 v6, 4, v2
    v_and_b32 v7, 15, v2
    v_add_u32 v8, s65, v6
    v_mul_lo_u32 v8, v8, s58
    v_lshlrev_b32 v9, 2, v6
    v_xor_b32 v10, v7, v9
    v_lshl_add_u32 v{vG}, v10, 4, v8
    v_add_u32 v{vG}, s59, v{vG}
    s_lshl_b32 s66, s64, 1
    v_xor_b32 v10, s66, v10
    v_lshl_add_u32 v{vU}, v10, 4, v8
    v_add_u32 v{vU}, s60, v{vU}
    v_lshrrev_b32 v6, 3, v2
    v_and_b32 v7, 7, v2
    v_add_u32 v8, s65, v6
    v_mul_u32_u24 v8, 2688, v8
    v_and_b32 v9, 2, v6
    v_lshlrev_b32 v9, 1, v9
    v_xor_b32 v10, v7, v9
    v_lshl_add_u32 v{vQ}, v10, 4, v8
    v_add_u32 v{vQ}, s61, v{vQ}
    s_mul_i32 s70, s{W}, 5120
    s_lshl_b32 s71, s58, 5
    s_lshl_b32 s72, s58, 2""")
    def dma_stage(i):
        slot = (i % NSLOT) * STG
        k.e(f"""s_mul_i32 s73, s56, s71
        s_add_u32 s74, s73, s72
        s_mul_i32 s75, s56, 86016
        s_add_u32 m0, s70, {slot}""")
        k.e("s_add_u32 s56, s56, 1")
        k.vmem(f"buffer_load_dwordx4 v{vG}, s[{sG}:{sG+3}], s73 offen lds", ("st", i))
        k.e(f"s_add_u32 m0, s70, {slot+1024}\ns_cmp_eq_u32 s56, 14")
        k.vmem(f"buffer_load_dwordx4 v{vG}, s[{sG}:{sG+3}], s74 offen lds", ("st", i))
        k.e(f"s_cselect_b32 s56, 0, s56\ns_add_u32 m0, s70, {slot+2048}\ns_nop 0")
        k.vmem(f"buffer_load_dwordx4 v{vU}, s[{sU}:{sU+3}], s73 offen lds", ("st", i))
        k.e(f"s_add_u32 m0, s70, {slot+3072}\ns_nop 0")
        k.vmem(f"buffer_load_dwordx4 v{vU}, s[{sU}:{sU+3}], s74 offen lds", ("st", i))
        k.e(f"s_add_u32 m0, s70, {slot+4096}\ns_nop 0")
        k.vmem(f"buffer_load_dwordx4 v{vQ}, s[{sQ}:{sQ+3}], s75 offen lds", ("st", i))
    for i in range(3):
        dma_stage(i)
    TL = ACC0 + 96
    k.e(f"""s_lshl_b32 s76, s2, 2
    s_add_u32 s76, s76, s{W}
    s_sub_u32 s77, s76, 784
    s_cmp_lt_u32 s76, 784
    s_cselect_b32 s77, s76, s77
    s_cselect_b32 s{sT}, s16, s8
    s_cselect_b32 s{sT+1}, s17, s9
    s_mov_b32 s{sT+2}, 401408
    s_cselect_b32 s{sT+2}, 1605632, s{sT+2}
    s_mov_b32 s{sT+3}, {SRD3}
    s_mul_i32 s78, s77, 9363
    s_lshr_b32 s78, s78, 16
    s_mul_i32 s79, s78, 7
    s_sub_u32 s79, s77, s79
    s_lshl_b32 s80, s78, 4
    s_lshr_b32 s81, s78, 1
    s_mul_i32 s81, s81, 28
    s_and_b32 s82, s78, 1
    s_lshl_b32 s83, s82, 4
    s_add_u32 s81, s81, s83
    s_mul_i32 s84, s79, 229376
    s_add_u32 s84, s84, {WDF}
    s_lshl_b32 s85, s79, 16
    s_add_u32 s85, s85, {WOF}
    s_cmp_lt_u32 s76, 784
    s_cselect_b32 s80, s80, s81
    s_cselect_b32 s84, s84, s85
    s_cselect_b32 s82, 0, s82
    s_lshl_b32 s85, s78, 11
    s_add_u32 s84, s84, s85
    s_cmp_lt_u32 s76, 1008
    s_cselect_b32 s84, s84, 0x7ff00000
    s_mul_i32 s80, s80, 896
    s_lshl_b32 s85, s79, 7
    s_add_u32 s80, s80, s85
    s_lshl_b32 s82, s82, 24""")
    k.e(f"""v_bfe_u32 v6, v3, 2, 1
    v_lshlrev_b32 v6, 4, v6
    v_lshrrev_b32 v7, 3, v3
    v_lshl_add_u32 v6, v7, 2, v6
    v_and_b32 v7, 3, v3
    v_add_u32 v6, v6, v7
    v_lshlrev_b32 v6, 2, v6
    v_mul_u32_u24 v7, 3584, v4
    v_add_u32 v6, v6, v7
    v_mul_lo_u32 v7, v4, s82
    v_add_u32 v7, v7, v6
    v_add_u32 v7, 7168, v7""")
    for j in range(8):
        k.vmem(f"buffer_load_dword v{TL+j}, v{6 if j < 4 else 7}, s[{sT}:{sT+3}], s80 offen offset:{(j&3)*896}", "T")
    for i in range(3, 5):
        dma_stage(i)
    k.e(f"""v_bfe_u32 v6, v2, 4, 1
    v_bfe_u32 v7, v2, 2, 2
    v_and_b32 v8, 3, v2
    v_mul_lo_u32 v9, v6, s63
    v_lshl_add_u32 v9, v8, 3, v9
    v_mul_u32_u24 v10, 5120, v4
    v_lshl_add_u32 v10, v7, 8, v10""")
    for p in range(8):
        k.e(f"""s_mul_i32 s65, s62, {p}
        v_add_u32 v11, s65, v9
        v_lshrrev_b32 v12, 8, v11
        v_and_b32 v11, 255, v11
        v_and_b32 v13, s64, v12
        v_lshl_add_u32 v13, v7, 1, v13
        v_lshlrev_b32 v13, 5, v13
        v_xor_b32 v11, v11, v13
        v_lshl_add_u32 v11, v12, 11, v11
        v_add_u32 v{VADDR+p}, v11, v10""")
    k.e(f"""v_lshlrev_b32 v9, 5, v6
    v_lshl_add_u32 v9, v8, 3, v9
    v_mul_u32_u24 v10, 5120, v4
    v_lshl_add_u32 v10, v7, 7, v10
    v_add_u32 v10, 4096, v10
    v_and_b32 v13, 2, v7
    v_lshlrev_b32 v13, 5, v13
    v_xor_b32 v11, v9, v13
    v_add_u32 v{VADDR+8}, v11, v10
    v_add_u32 v9, 56, v9
    v_xor_b32 v11, v9, v13
    v_add_u32 v{VADDR+9}, v11, v10""")
    k.e("s_mov_b32 s86, 0x3f803f80\ns_mov_b32 s87, 0x00003f80\ns_mov_b32 s88, 0x3f800000")
    k.e("v_mov_b32 v6, 0\nv_mov_b32 v7, 0\nv_mov_b32 v8, 0\nv_mov_b32 v9, 0")
    k.wait_vm("x")
    for i in range(112):
        k.e(f"v_dot2c_f32_bf16 v{6+(i&3)}, s86, v{X0+i}")
    for i in range(5, 7):
        dma_stage(i)
    k.e("""v_add_f32 v6, v6, v7
    v_add_f32 v8, v8, v9
    v_add_f32 v6, v6, v8
    v_mov_b32 v7, v6
    s_nop 1
    v_permlane32_swap_b32 v6, v7
    v_add_f32 v6, v6, v7""")
    k.e(f"v_mul_f32 v30, {hex(f2u(-1.0/448))}, v6")
    k.e("v_mov_b32 v6, 0\nv_mov_b32 v7, 0\nv_mov_b32 v8, 0\nv_mov_b32 v9, 0")
    TMP = ACC0
    for b in range(14):
        for i in range(8):
            r = X0 + 8*b + i
            k.e(f"v_dot2_f32_bf16 v{TMP+2*i}, v{r}, s87, v30\nv_dot2_f32_bf16 v{TMP+2*i+1}, v{r}, s88, v30")
        if b > 0:
            for i in range(8):
                r = X0 + 8*(b-1) + i
                k.e(f"v_dot2c_f32_bf16 v{6+(i&3)}, v{r}, v{r}")
        else:
            k.e("s_nop 1")
        for i in range(8):
            k.e(f"v_cvt_pk_bf16_f32 v{X0+8*b+i}, v{TMP+2*i}, v{TMP+2*i+1}")
    for i in range(8):
        r = X0 + 8*13 + i
        k.e(f"v_dot2c_f32_bf16 v{6+(i&3)}, v{r}, v{r}")
    k.wait_vm("T")
    k.e("s_mov_b32 s89, 0x05040100\ns_mov_b32 s90, 0x07060302")
    for d in range(4):
        k.e(f"v_perm_b32 v{TL+8+d}, v{TL+2*d+1}, v{TL+2*d}, s89")
        k.e(f"v_perm_b32 v{TL+12+d}, v{TL+2*d+1}, v{TL+2*d}, s90")
    k.vmem(f"buffer_store_dwordx4 {vr(TL+8,4)}, v{vL16}, s[{sWS}:{sWS+3}], s84 offen", "Ts")
    k.vmem(f"buffer_store_dwordx4 {vr(TL+12,4)}, v{vL16}, s[{sWS}:{sWS+3}], s84 offen offset:1024", "Ts")
    k.e(f"""v_add_f32 v6, v6, v7
    v_add_f32 v8, v8, v9
    v_add_f32 v6, v6, v8
    v_mov_b32 v7, v6
    v_mov_b32 v8, {hex(f2u(1e-5))}
    s_mov_b32 s91, {hex(f2u(1.0/448))}
    v_permlane32_swap_b32 v6, v7
    v_add_f32 v6, v6, v7
    v_fma_f32 v30, v6, s91, v8
    v_rsq_f32 v31, v30""")
    def acc(p):
        return vr(ACC0 + 16*p, 16) if p < 7 else ar(AACC + 16*(p-7), 16)
    items = [(st, s2, p) for st in range(14) for s2 in range(2) for p in range(10)]
    D = 6
    cur_base = [0]
    def issue_reads(n):
        st, s2, p = items[n]
        slot = st % NSLOT
        if s2 == 0 and p == 0:
            k.wait_vm(("st", st))
            k.e("s_barrier")
            if 2 <= st <= 8:
                dma_stage(st + 5)
            base = (slot // 3) * 3 * STG
            if base != cur_base[0]:
                delta = base - cur_base[0]
                for q in range(10):
                    if delta > 0: k.e(f"v_add_u32 v{VADDR+q}, {delta}, v{VADDR+q}")
                    else: k.e(f"v_subrev_u32 v{VADDR+q}, {-delta}, v{VADDR+q}")
                cur_base[0] = base
        off = slot * STG - cur_base[0] + s2 * 10240
        h2 = 1024 if p < 8 else 512
        fr = AW + 4 * (n % NW)
        k.ds(f"ds_read_b64_tr_b16 {ar(fr,2)}, v{VADDR+p} offset:{off}", n)
        k.ds(f"ds_read_b64_tr_b16 {ar(fr+2,2)}, v{VADDR+p} offset:{off+h2}", n)
    for n in range(D):
        issue_reads(n)
    for n, (st, s2, p) in enumerate(items):
        k.wait_lg(n)
        ks = 2*st + s2
        c = "0" if ks == 0 else acc(p)
        k.e(f"{MFMA} {acc(p)}, {ar(AW+4*(n%NW),4)}, {vr(X0+4*ks,4)}, {c}")
        if n + D < len(items):
            issue_reads(n + D)
    k.e("s_barrier")
    k.e("s_mov_b32 s92, 0\ns_mov_b32 s93, -1")
    k.e("s_nop 7\ns_nop 2")
    for i in range(48):
        k.e(f"v_accvgpr_read_b32 v{X0+i}, a{AACC+i}")
    def accv(p):
        return ACC0 + 16*p if p < 7 else X0 + 16*(p-7)
    TE = X0 + 48
    def qkv_pack(p, sTidx):
        A = accv(p)
        k.e(f"""s_cmp_lt_u32 s{sTidx}, 16
        s_cselect_b32 s65, {hex(f2u(CQ))}, 1.0
        s_cselect_b32 s66, 0, 0x3f80
        v_mul_f32 v6, s65, v31
        v_mov_b32 v8, s66
        v_mov_b32 v7, v6""")
        for i in range(8):
            k.e(f"v_pk_mul_f32 {vr(A+2*i,2)}, {vr(A+2*i,2)}, v[6:7]")
        for i in range(8):
            k.e(f"v_cvt_pk_bf16_f32 v{A+i}, v{A+2*i}, v{A+2*i+1}")
        k.e(f"v_cndmask_b32 v{A+6}, v{A+6}, v8, s[92:93]\nv_cndmask_b32 v{A+7}, v{A+7}, 0, s[92:93]")
    def qkv_store(p, sTidx):
        A = accv(p)
        k.e(f"s_lshl_b32 s65, s{sTidx}, 17\ns_lshl_b32 s66, s54, 11\ns_add_u32 s65, s65, s66")
        k.e(f"buffer_store_dwordx4 {vr(A,4)}, v{vL16}, s[{sWS}:{sWS+3}], s65 offen")
        k.e(f"buffer_store_dwordx4 {vr(A+4,4)}, v{vL16}, s[{sWS}:{sWS+3}], s65 offen offset:1024")
    k.e(f"s_cmp_ge_u32 s{CG}, 14\ns_cbranch_scc1 L1_type2")
    k.e(f"s_lshl_b32 s94, s{CG}, 1")
    qkv_pack(8, 94); qkv_store(8, 94)
    k.e("s_add_u32 s94, s94, 1")
    qkv_pack(9, 94); qkv_store(9, 94)
    k.e(f"""v_mul_f32 v8, {hex(f2u(GK1))}, v31
    v_mul_f32 v10, v31, v31
    v_mul_f32 v10, v10, v31
    v_mul_f32 v10, {hex(f2u(GK2))}, v10
    v_mov_b32 v9, v8
    v_mov_b32 v11, v10
    v_mov_b32 v12, v30
    v_mov_b32 v13, v30
    s_lshr_b32 s65, s54, 1
    s_mul_i32 s65, s65, 229376
    s_and_b32 s66, s54, 1
    s_lshl_b32 s66, s66, 10
    s_add_u32 s65, s65, s66
    s_lshl_b32 s66, s{CG}, 14
    s_add_u32 s65, s65, s66
    s_add_u32 s65, s65, {HF}""")
    for p in range(8):
        A = accv(p)
        T = TE + 16 * (p & 1)
        for i in range(4): k.e(f"v_pk_mul_f32 {vr(T+2*i,2)}, {vr(A+2*i,2)}, {vr(A+2*i,2)}")
        for i in range(4): k.e(f"v_pk_fma_f32 {vr(T+2*i,2)}, {vr(T+2*i,2)}, v[10:11], v[8:9]")
        for i in range(4): k.e(f"v_pk_mul_f32 {vr(T+2*i,2)}, {vr(T+2*i,2)}, {vr(A+2*i,2)}")
        for i in range(8): k.e(f"v_exp_f32 v{T+i}, v{T+i}")
        for i in range(4): k.e(f"v_pk_mul_f32 {vr(A+2*i,2)}, {vr(A+2*i,2)}, {vr(A+8+2*i,2)}")
        for i in range(4): k.e(f"v_pk_fma_f32 {vr(T+2*i,2)}, {vr(T+2*i,2)}, v[12:13], v[12:13]")
        for i in range(8): k.e(f"v_rcp_f32 v{T+i}, v{T+i}")
        k.e("s_nop 0")
        for i in range(4): k.e(f"v_pk_mul_f32 {vr(A+2*i,2)}, {vr(A+2*i,2)}, {vr(T+2*i,2)}")
        for i in range(4): k.e(f"v_cvt_pk_bf16_f32 v{T+8+i}, v{A+2*i}, v{A+2*i+1}")
        k.e(f"buffer_store_dwordx4 {vr(T+8,4)}, v{vL16}, s[{sWS}:{sWS+3}], s65 offen offset:{2048*(p&1)}")
        if p & 1: k.e("s_add_u32 s65, s65, 4096")
    k.e("s_endpgm")
    k.label("L1_type2")
    k.e(f"s_sub_u32 s94, s{CG}, 14\ns_mul_i32 s94, s94, 10\ns_add_u32 s94, s94, 28")
    for p in range(10):
        qkv_pack(p, 94)
    k.e(f"""s_mul_i32 s65, s{W}, 20480
    v_lshlrev_b32 v6, 6, v3
    v_lshl_add_u32 v6, v4, 3, v6
    v_add_u32 v6, s65, v6
    v_bfe_u32 v7, v2, 2, 2
    v_lshl_add_u32 v7, v4, 2, v7
    v_lshlrev_b32 v7, 6, v7
    v_bfe_u32 v8, v2, 4, 1
    v_lshl_add_u32 v7, v8, 5, v7
    v_and_b32 v8, 3, v2
    v_lshl_add_u32 v7, v8, 3, v7
    v_add_u32 v7, s65, v7""")
    def vtr_w(p):
        A = accv(p)
        for g in range(4):
            k.e(f"ds_write_b64 v6, {vr(A+2*g,2)} offset:{p*2048+g*16}")
    def vtr_r(p):
        A = accv(p)
        for t in range(2):
            for b in range(2):
                k.e(f"ds_read_b64_tr_b16 {vr(A+4*t+2*b,2)}, v7 offset:{p*2048+(16*t+8*b)*64}")
    for p in range(4, 10): vtr_w(p)
    k.e(f"s_cmp_eq_u32 s{CG}, 14\ns_cbranch_scc1 L1_t2b")
    for p in range(4): vtr_w(p)
    k.e("s_waitcnt lgkmcnt(0)")
    for p in range(4): vtr_r(p)
    k.label("L1_t2b")
    k.e("s_waitcnt lgkmcnt(0)")
    for p in range(4, 10): vtr_r(p)
    k.e("s_waitcnt lgkmcnt(0)")
    for p in range(10):
        qkv_store(p, 94)
        k.e("s_add_u32 s94, s94, 1")
    k.label("L1_end")
    k.e("s_endpgm")
    return k, 256, 80, NSLOT * STG

def gemm_exchange(k, ACC, lds_base, vW, vRd, sw):
    for t in range(4):
        for q in range(4):
            k.e(f"ds_write_b128 v{vW}, {vr(ACC+16*t+4*q,4)} offset:{t*4096+q*1024}")

def gen_k2():
    k = K("k2_kernel")
    sK, sV, sWS, sH, sWd, sX = 24, 28, 32, 36, 40, 44
    OX, MX, GX = 0, 65536, 69632
    k.e("s_cmp_ge_u32 s2, 256\ns_cbranch_scc1 L2_end")
    k.e("s_load_dwordx2 s[4:5], s[0:1], 0\ns_load_dwordx2 s[20:21], s[0:1], 72")
    k.e("""v_lshrrev_b32 v1, 6, v0
    v_and_b32 v2, 63, v0
    v_readfirstlane_b32 s53, v1
    s_and_b32 s50, s2, 7
    s_lshr_b32 s51, s2, 3
    v_lshlrev_b32 v3, 4, v2
    s_cmp_ge_u32 s53, 4
    s_cbranch_scc1 L2_gemm""")
    Q0, O0, KR, VR, S0, P0, M0 = 8, 40, 104, 136, 168, 200, 216
    TM = 220
    k.e("""s_setprio 1
    s_lshl_b32 s54, s50, 1
    s_and_b32 s55, s51, 1
    s_add_u32 s54, s54, s55
    s_lshr_b32 s55, s51, 1
    s_lshl_b32 s56, s54, 17
    s_lshl_b32 s57, s53, 15
    s_add_u32 s57, s57, s56
    s_add_u32 s57, s57, 0x200000
    s_lshl_b32 s58, s55, 13
    s_add_u32 s58, s58, s56
    s_waitcnt lgkmcnt(0)""")
    k.e(f"""s_add_u32 s{sK}, s20, s57
    s_addc_u32 s{sK+1}, s21, 0
    s_mov_b32 s{sK+2}, 32768
    s_mov_b32 s{sK+3}, {SRD3}
    s_add_u32 s{sV}, s{sK}, 0x200000
    s_addc_u32 s{sV+1}, s{sK+1}, 0
    s_mov_b32 s{sV+2}, 32768
    s_mov_b32 s{sV+3}, {SRD3}""")
    srd(k, sWS, "s20", "s21", WS_SIZE)
    def ldK(b, off, so):
        k.e(f"buffer_load_dwordx4 {vr(KR+8*b,4)}, v3, s[{sK}:{sK+3}], {so} offen offset:{off}")
        k.e(f"buffer_load_dwordx4 {vr(KR+8*b+4,4)}, v3, s[{sK}:{sK+3}], {so} offen offset:{off+1024}")
    def ldV(b, off, so):
        k.e(f"buffer_load_dwordx4 {vr(VR+8*b,4)}, v3, s[{sV}:{sV+3}], {so} offen offset:{off}")
        k.e(f"buffer_load_dwordx4 {vr(VR+8*b+4,4)}, v3, s[{sV}:{sV+3}], {so} offen offset:{off+1024}")
    k.e("s_add_u32 s59, s58, 4096\ns_mov_b32 s60, 4096")
    ldK(0, 0, "0")
    for qt in range(4):
        so = "s58" if qt < 2 else "s59"
        k.e(f"buffer_load_dwordx4 {vr(Q0+8*qt,4)}, v3, s[{sWS}:{sWS+3}], {so} offen offset:{(qt&1)*2048}")
        k.e(f"buffer_load_dwordx4 {vr(Q0+8*qt+4,4)}, v3, s[{sWS}:{sWS+3}], {so} offen offset:{(qt&1)*2048+1024}")
    ldV(0, 0, "0"); ldK(1, 2048, "0"); ldV(1, 2048, "0"); ldK(2, 0, "s60"); ldV(2, 0, "s60"); ldK(3, 2048, "s60")
    for i in range(64): k.e(f"v_mov_b32 v{O0+i}, 0")
    for i in range(8): k.e(f"v_mov_b32 v{VR+24+i}, 0\nv_mov_b32 v{P0+8+i}, 0")
    k.e("s_mov_b32 s92, 0\ns_mov_b32 s93, -1\ns_mov_b32 s61, 0x42800000\ns_mov_b32 s62, 0xffff0000")
    k.e("s_waitcnt vmcnt(12)")
    def qk(kb, qt, sb):
        return [f"{MFMA} {vr(S0+16*sb,16)}, {vr(KR+8*kb,4)}, {vr(Q0+8*qt,4)}, 0",
                f"{MFMA} {vr(S0+16*sb,16)}, {vr(KR+8*kb+4,4)}, {vr(Q0+8*qt+4,4)}, {vr(S0+16*sb,16)}"]
    def maxops(sb, d):
        S = S0 + 16*sb
        ops = [f"v_max3_f32 v{d}, v{S}, v{S+1}, v{S+2}", f"v_max3_f32 v{d+1}, v{S+3}, v{S+4}, v{S+5}"]
        for i in range(2):
            ops += [f"v_max3_f32 v{d}, v{d}, v{S+6+4*i}, v{S+7+4*i}", f"v_max3_f32 v{d+1}, v{d+1}, v{S+8+4*i}, v{S+9+4*i}"]
        ops += [f"v_max3_f32 v{d}, v{d}, v{S+14}, v{S+15}", f"v_max_f32 v{d}, v{d}, v{d+1}"]
        return ops
    for qt in range(4):
        for o in qk(0, qt, qt & 1): k.e(o)
        k.e("s_nop 7\ns_nop 3")
        for o in maxops(qt & 1, TM): k.e(o)
        k.e(f"""v_mov_b32 v{TM+1}, v{TM}
        s_nop 1
        v_permlane32_swap_b32 v{TM}, v{TM+1}
        v_max_f32 v{TM}, v{TM}, v{TM+1}
        v_cvt_pk_bf16_f32 v{TM+1}, -v{TM}, 0
        v_lshlrev_b32 v{M0+qt}, 16, v{TM+1}
        v_cndmask_b32 v{Q0+8*qt+6}, v{Q0+8*qt+6}, v{TM+1}, s[92:93]""")
    k.e("s_nop 1")
    for o in qk(0, 0, 0): k.e(o)
    k.e("s_mov_b32 s63, 8192\ns_mov_b32 s64, 6144\ns_mov_b32 s65, 4\ns_nop 7\ns_nop 0")
    k.label("L2_loop")
    stubs = []
    for kt in range(4):
        for qt in range(4):
            n = 4*kt + qt
            sb = n & 1
            nkt, nqt = (kt + (qt == 3)) % 4, (qt + 1) % 4
            pkt, pqt = (kt - (qt == 0)) % 4, (qt - 1) % 4
            S = S0 + 16*sb; P = P0 + 8*sb; PP = P0 + 8*(1-sb)
            m = qk(nkt, nqt, 1 - sb)
            pv = [f"{MFMA} {vr(O0+16*pqt,16)}, {vr(VR+8*pkt+4*t,4)}, {vr(PP+4*t,4)}, {vr(O0+16*pqt,16)}" for t in range(2)]
            ex = [f"v_exp_f32 v{S+i}, v{S+i}" for i in range(16)]
            cv = [f"v_cvt_pk_bf16_f32 v{P+i}, v{S+2*i}, v{S+2*i+1}" for i in range(8)]
            mx = maxops(1 - sb, TM)
            if qt == 3: k.e("s_waitcnt vmcnt(10)")
            k.e(m[0])
            if qt == 3:
                ldK(kt, 0, "s63"); k.e("s_add_u32 s63, s63, 2048")
            for o in ex[0:4]: k.e(o)
            k.e(m[1])
            for o in ex[4:8] + cv[0:2]: k.e(o)
            if qt == 1: k.e("s_waitcnt vmcnt(10)")
            k.e(pv[0])
            if qt == 1:
                ldV((kt + 3) % 4, 0, "s64"); k.e("s_add_u32 s64, s64, 2048")
            for o in ex[8:12] + cv[2:4]: k.e(o)
            k.e(pv[1])
            for o in ex[12:16] + cv[4:6] + mx[0:4] + cv[6:8] + mx[4:8]: k.e(o)
            k.e(f"v_cmp_lt_f32 vcc, s61, v{TM}")
            k.e(f"s_cbranch_vccnz L2_stub{n}")
            k.label(f"L2_ret{n}")
            stubs.append((n, nqt))
    k.e("s_sub_u32 s65, s65, 1\ns_cmp_lg_u32 s65, 0\ns_cbranch_scc1 L2_loop")
    for t in range(2):
        k.e(f"{MFMA} {vr(O0+48,16)}, {vr(VR+24+4*t,4)}, {vr(P0+8+4*t,4)}, {vr(O0+48,16)}")
    k.e(f"""s_lshl_b32 s66, s53, 14
    v_add_u32 v4, s66, v3
    s_lshl_b32 s67, s53, 10
    v_lshlrev_b32 v5, 2, v2
    v_add_u32 v6, s67, v5
    v_add_u32 v6, {MX}, v6""")
    for qt in range(4):
        k.e(f"ds_write_b32 v6, v{M0+qt} offset:{qt*256}")
    k.e("s_nop 3")
    for qt in range(4):
        for q in range(4):
            k.e(f"ds_write_b128 v4, {vr(O0+16*qt+4*q,4)} offset:{qt*4096+q*1024}")
    k.e(f"""s_lshl_b32 s66, s53, 12
    v_add_u32 v4, s66, v3
    s_lshl_b32 s67, s53, 8
    v_add_u32 v6, s67, v5
    v_add_u32 v6, {MX}, v6
    s_waitcnt lgkmcnt(0)
    s_barrier""")
    for w in range(4):
        k.e(f"ds_read_b32 v{M0+w}, v6 offset:{w*1024}")
    for w in range(4):
        for q in range(4):
            k.e(f"ds_read_b128 {vr(O0+16*w+4*q,4)}, v4 offset:{w*16384+q*1024}")
    k.e(f"""s_waitcnt lgkmcnt(15)
    v_min3_f32 v{TM}, v{M0}, v{M0+1}, v{M0+2}
    v_min_f32 v{TM}, v{TM}, v{M0+3}""")
    for w in range(4):
        k.e(f"v_sub_f32 v{M0+w}, v{TM}, v{M0+w}")
    for w in range(4):
        k.e(f"v_exp_f32 v{M0+w}, v{M0+w}")
    k.e("s_waitcnt lgkmcnt(0)")
    for i in range(16): k.e(f"v_mul_f32 v{O0+i}, v{O0+i}, v{M0}")
    for w in range(1, 4):
        for i in range(16): k.e(f"v_fmac_f32 v{O0+i}, v{O0+16*w+i}, v{M0+w}")
    k.e(f"""v_mov_b32 v{TM}, v{O0+12}
    v_mov_b32 v{TM+1}, v{O0+12}
    s_lshl_b32 s66, s55, 2
    s_add_u32 s66, s66, s53
    v_permlane32_swap_b32 v{TM}, v{TM+1}
    v_rcp_f32 v{TM}, v{TM+1}
    s_lshr_b32 s67, s66, 1
    s_lshl_b32 s67, s67, 16
    s_and_b32 s66, s66, 1
    s_lshl_b32 s66, s66, 10
    s_add_u32 s67, s67, s66
    s_lshl_b32 s66, s54, 12
    s_add_u32 s67, s67, s66
    s_add_u32 s67, s67, {OF}""")
    for i in range(16): k.e(f"v_mul_f32 v{O0+i}, v{O0+i}, v{TM}")
    for i in range(8): k.e(f"v_cvt_pk_bf16_f32 v{P0+i}, v{O0+2*i}, v{O0+2*i+1}")
    k.e(f"buffer_store_dwordx4 {vr(P0,4)}, v3, s[{sWS}:{sWS+3}], s67 offen")
    k.e(f"buffer_store_dwordx4 {vr(P0+4,4)}, v3, s[{sWS}:{sWS+3}], s67 offen offset:2048")
    k.e("s_endpgm")
    for n, nqt in stubs:
        k.label(f"L2_stub{n}")
        k.e(f"s_call_b64 s[70:71], L2_rare{nqt}\ns_branch L2_ret{n}")
    for qt in range(4):
        sb = qt & 1
        S = S0 + 16*sb
        k.label(f"L2_rare{qt}")
        k.e(f"""v_mov_b32 v{TM+1}, v{TM}
        s_nop 1
        v_permlane32_swap_b32 v{TM}, v{TM+1}
        v_max3_f32 v{TM}, v{TM}, v{TM+1}, 0
        v_sub_f32 v{TM}, v{M0+qt}, v{TM}
        v_cvt_pk_bf16_f32 v{TM+1}, v{TM}, 0
        v_lshlrev_b32 v{TM}, 16, v{TM+1}
        v_cndmask_b32 v{Q0+8*qt+6}, v{Q0+8*qt+6}, v{TM+1}, s[92:93]
        v_sub_f32 v{TM+2}, v{TM}, v{M0+qt}
        v_mov_b32 v{M0+qt}, v{TM}
        v_exp_f32 v{TM+3}, v{TM+2}""")
        for i in range(16): k.e(f"v_add_f32 v{S+i}, v{S+i}, v{TM+2}")
        for i in range(16): k.e(f"v_mul_f32 v{O0+16*qt+i}, v{O0+16*qt+i}, v{TM+3}")
        k.e("s_nop 1\ns_setpc_b64 s[70:71]")
    k.label("L2_gemm")
    ACC, RG = 8, 72
    k.e("""s_cmp_ge_u32 s51, 28
    s_cbranch_scc1 L2_end
    s_sub_u32 s53, s53, 4
    s_mul_i32 s54, s51, 9363
    s_lshr_b32 s54, s54, 16
    s_mul_i32 s55, s54, 7
    s_sub_u32 s55, s51, s55
    s_lshl_b32 s56, s50, 2
    s_add_u32 s54, s54, s56
    s_mul_i32 s56, s53, 57344
    s_mul_i32 s57, s54, 229376
    s_add_u32 s57, s57, s56
    s_mul_i32 s58, s55, 229376
    s_add_u32 s58, s58, s56""")
    k.e(f"""s_add_u32 s57, s57, {HF}
    s_add_u32 s58, s58, {WDF}
    s_waitcnt lgkmcnt(0)
    s_add_u32 s{sH}, s20, s57
    s_addc_u32 s{sH+1}, s21, 0
    s_mov_b32 s{sH+2}, 57344
    s_mov_b32 s{sH+3}, {SRD3}
    s_add_u32 s{sWd}, s20, s58
    s_addc_u32 s{sWd+1}, s21, 0
    s_mov_b32 s{sWd+2}, 57344
    s_mov_b32 s{sWd+3}, {SRD3}""")
    srd(k, sWS, "s20", "s21", WS_SIZE)
    srd(k, sX, "s4", "s5", 1835008)
    def ldG(b, so, off):
        R = RG + 16*b
        k.e(f"buffer_load_dwordx4 {vr(R,4)}, v3, s[{sWd}:{sWd+3}], {so} offen offset:{off}")
        k.e(f"buffer_load_dwordx4 {vr(R+4,4)}, v3, s[{sWd}:{sWd+3}], {so} offen offset:{off+1024}")
        k.e(f"buffer_load_dwordx4 {vr(R+8,4)}, v3, s[{sH}:{sH+3}], {so} offen offset:{off}")
        k.e(f"buffer_load_dwordx4 {vr(R+12,4)}, v3, s[{sH}:{sH+3}], {so} offen offset:{off+1024}")
    XR = 140
    k.e(f"""v_and_b32 v4, 31, v2
    s_lshl_b32 s59, s54, 6
    s_lshr_b32 s60, s53, 1
    s_lshl_b32 s60, s60, 5
    s_add_u32 s59, s59, s60
    v_add_u32 v4, s59, v4
    v_mul_u32_u24 v4, 896, v4
    v_lshrrev_b32 v5, 5, v2
    v_lshl_add_u32 v4, v5, 6, v4
    s_lshl_b32 s59, s55, 7
    s_and_b32 s60, s53, 1
    s_lshl_b32 s60, s60, 5
    s_add_u32 s59, s59, s60
    buffer_load_dwordx4 {vr(XR,4)}, v4, s[{sX}:{sX+3}], s59 offen
    buffer_load_dwordx4 {vr(XR+4,4)}, v4, s[{sX}:{sX+3}], s59 offen offset:16
    s_mov_b32 s60, 4096""")
    ldG(0, "0", 0); ldG(1, "0", 2048); ldG(2, "s60", 0); ldG(3, "s60", 2048)
    for i in range(64): k.e(f"v_mov_b32 v{ACC+i}, 0")
    k.e("s_mov_b32 s61, 8192\ns_mov_b32 s62, 7")
    k.label("L2_gloop")
    for b in range(4):
        R = RG + 16*b
        k.e("s_waitcnt vmcnt(12)")
        for u in range(2):
            for e in range(2):
                a = ACC + 16*(2*u + e)
                k.e(f"{MFMA} {vr(a,16)}, {vr(R+4*e,4)}, {vr(R+8+4*u,4)}, {vr(a,16)}")
        ldG(b, "s61", 0)
        k.e("s_add_u32 s61, s61, 2048")
    k.e("s_sub_u32 s62, s62, 1\ns_cmp_lg_u32 s62, 0\ns_cbranch_scc1 L2_gloop")
    k.e(f"""s_lshl_b32 s66, s53, 14
    s_add_u32 s66, s66, {GX}
    v_add_u32 v4, s66, v3
    s_nop 7""")
    gemm_exchange(k, ACC, GX, 4, None, None)
    k.e(f"""s_lshr_b32 s66, s53, 1
    s_lshl_b32 s66, s66, 13
    s_and_b32 s67, s53, 1
    s_lshl_b32 s67, s67, 11
    s_add_u32 s66, s66, s67
    s_add_u32 s66, s66, {GX}
    v_add_u32 v4, s66, v3
    s_waitcnt lgkmcnt(0)
    s_barrier""")
    for w in range(4):
        for e in range(2):
            for q in range(2):
                k.e(f"ds_read_b128 {vr(ACC+16*w+8*e+4*q,4)}, v4 offset:{w*16384+e*4096+q*1024}")
    k.e("s_waitcnt vmcnt(0)")
    for i in range(8):
        k.e(f"v_lshlrev_b32 v{XR+8+i}, 16, v{XR+i}\nv_and_b32 v{XR+16+i}, 0xffff0000, v{XR+i}")
    k.e(f"""s_mul_i32 s66, s54, 7
    s_add_u32 s66, s66, s55
    s_lshl_b32 s66, s66, 14
    s_lshl_b32 s67, s53, 12
    s_add_u32 s66, s66, s67
    s_add_u32 s66, s66, {PART}
    s_waitcnt lgkmcnt(0)""")
    for i in range(16):
        k.e(f"v_add_f32 v{ACC+i}, v{ACC+i}, v{XR+8+i}\nv_add_f32 v{ACC+16+i}, v{ACC+16+i}, v{ACC+32+i}\nv_add_f32 v{ACC+i}, v{ACC+i}, v{ACC+48+i}")
    for i in range(16):
        k.e(f"v_add_f32 v{ACC+i}, v{ACC+i}, v{ACC+16+i}")
    for q in range(4):
        k.e(f"buffer_store_dwordx4 {vr(ACC+4*q,4)}, v3, s[{sWS}:{sWS+3}], s66 offen offset:{q*1024}")
    k.label("L2_end")
    k.e("s_endpgm")
    return k, 256, 0, GX + 65536

def gen_k3():
    k = K("k3_kernel")
    sO, sWo, sWS, sOut = 24, 28, 32, 36
    ACC, RG, PR = 8, 72, 200
    k.e("s_cmp_ge_u32 s2, 224\ns_cbranch_scc1 L3_end")
    k.e("s_load_dwordx2 s[4:5], s[0:1], 56\ns_load_dwordx2 s[20:21], s[0:1], 72")
    k.e("""v_lshrrev_b32 v1, 6, v0
    v_and_b32 v2, 63, v0
    v_readfirstlane_b32 s53, v1
    s_and_b32 s50, s2, 7
    s_lshr_b32 s51, s2, 3
    v_lshlrev_b32 v3, 4, v2
    s_mul_i32 s54, s51, 9363
    s_lshr_b32 s54, s54, 16
    s_mul_i32 s55, s54, 7
    s_sub_u32 s55, s51, s55
    s_lshl_b32 s56, s50, 2
    s_add_u32 s54, s54, s56
    s_lshl_b32 s56, s53, 14
    s_lshl_b32 s57, s54, 16
    s_add_u32 s57, s57, s56
    s_lshl_b32 s58, s55, 16
    s_add_u32 s58, s58, s56""")
    k.e(f"""s_add_u32 s57, s57, {OF}
    s_add_u32 s58, s58, {WOF}
    s_mul_i32 s66, s54, 7
    s_add_u32 s66, s66, s55
    s_lshl_b32 s66, s66, 14
    s_lshl_b32 s67, s53, 12
    s_add_u32 s66, s66, s67
    s_add_u32 s66, s66, {PART}
    s_waitcnt lgkmcnt(0)""")
    srd(k, sWS, "s20", "s21", WS_SIZE)
    srd(k, sOut, "s4", "s5", 1835008)
    for b in range(8):
        R = RG + 16*b
        off = (b & 1) * 2048
        k.vmem(f"buffer_load_dwordx4 {vr(R,4)}, v3, s[{sWS}:{sWS+3}], s58 offen offset:{off}", b)
        k.vmem(f"buffer_load_dwordx4 {vr(R+4,4)}, v3, s[{sWS}:{sWS+3}], s58 offen offset:{off+1024}", b)
        k.vmem(f"buffer_load_dwordx4 {vr(R+8,4)}, v3, s[{sWS}:{sWS+3}], s57 offen offset:{off}", b)
        k.vmem(f"buffer_load_dwordx4 {vr(R+12,4)}, v3, s[{sWS}:{sWS+3}], s57 offen offset:{off+1024}", b)
        if b & 1: k.e("s_add_u32 s57, s57, 4096\ns_add_u32 s58, s58, 4096")
    for q in range(4):
        k.vmem(f"buffer_load_dwordx4 {vr(PR+4*q,4)}, v3, s[{sWS}:{sWS+3}], s66 offen offset:{q*1024}", "p")
    k.e(f"""v_and_b32 v4, 31, v2
    s_lshl_b32 s59, s54, 6
    s_lshr_b32 s60, s53, 1
    s_lshl_b32 s60, s60, 5
    s_add_u32 s59, s59, s60
    v_add_u32 v4, s59, v4
    v_mul_u32_u24 v4, 896, v4
    v_lshrrev_b32 v5, 5, v2
    v_lshl_add_u32 v6, v5, 6, v4
    s_lshl_b32 s59, s55, 7
    s_and_b32 s60, s53, 1
    s_lshl_b32 s60, s60, 5
    s_add_u32 s59, s59, s60""")
    for b in range(8):
        R = RG + 16*b
        k.wait_vm(b)
        for u in range(2):
            for e in range(2):
                a = ACC + 16*(2*u + e)
                k.e(f"{MFMA} {vr(a,16)}, {vr(R+4*e,4)}, {vr(R+8+4*u,4)}, {'0' if b == 0 else vr(a,16)}")
    k.e(f"""s_lshl_b32 s66, s53, 14
    v_add_u32 v4, s66, v3
    s_nop 7
    s_nop 1""")
    gemm_exchange(k, ACC, 0, 4, None, None)
    k.e(f"""s_lshr_b32 s66, s53, 1
    s_lshl_b32 s66, s66, 13
    s_and_b32 s67, s53, 1
    s_lshl_b32 s67, s67, 11
    s_add_u32 s66, s66, s67
    v_add_u32 v4, s66, v3
    s_waitcnt lgkmcnt(0)
    s_barrier""")
    for w in range(4):
        for e in range(2):
            for q in range(2):
                k.e(f"ds_read_b128 {vr(ACC+16*w+8*e+4*q,4)}, v4 offset:{w*16384+e*4096+q*1024}")
    k.e("s_waitcnt vmcnt(0) lgkmcnt(0)")
    for i in range(16):
        k.e(f"v_add_f32 v{ACC+i}, v{ACC+i}, v{PR+i}\nv_add_f32 v{ACC+16+i}, v{ACC+16+i}, v{ACC+32+i}\nv_add_f32 v{ACC+i}, v{ACC+i}, v{ACC+48+i}")
    for i in range(16):
        k.e(f"v_add_f32 v{ACC+i}, v{ACC+i}, v{ACC+16+i}")
    for i in range(8):
        k.e(f"v_cvt_pk_bf16_f32 v{RG+i}, v{ACC+i}, v{ACC+8+i}")
    k.e(f"buffer_store_dwordx4 {vr(RG,4)}, v6, s[{sOut}:{sOut+3}], s59 offen")
    k.e(f"buffer_store_dwordx4 {vr(RG+4,4)}, v6, s[{sOut}:{sOut+3}], s59 offen offset:16")
    k.label("L3_end")
    k.e("s_endpgm")
    return k, 216, 0, 65536

def main(out):
    ks = [gen_k1(), gen_k2(), gen_k3()]
    grids = [(256, 256), (256, 512), (224, 256)]
    hdr = "; parallel_sum(mha_block, geglu_ffn): 3-launch pipeline (generated by gen/gen.py)\n"
    for (k, v, a, lds), (g, b) in zip(ks, grids):
        hdr += f"; @launch kernel={k.name} grid=({g},1,1) block=({b},1,1) lds={lds}\n"
    txt = hdr + '.amdgcn_target "amdgcn-amd-amdhsa--gfx950"\n.text\n'
    descs = ""
    for k, v, a, lds in ks:
        body, desc = kernel_text(k, v, a)
        txt += body; descs += desc
        print(k.name, end=": ")
        hazard.check(k.text())
    txt += '.section .rodata,"a"\n' + descs
    open(out, "w").write(txt)

if __name__ == "__main__":
    main(sys.argv[1] if len(sys.argv) > 1 else "parallel_sum__mha_block__geglu_ffn__prompt.s")
```

```python
import math, sys
from asmlib import *
import hazard

QF = 0
HF = 0x600000
WDF = 0xD00000
WOF = 0xE88000
OF = 0x1000000
PART = 0x1200000
WS_SIZE = 0x1680000
SRD3 = "0x00020000"
CQ = math.log2(math.e) / math.sqrt(28.0)
GK1 = -2.0 * math.log2(math.e) * math.sqrt(2.0 / math.pi)
GK2 = GK1 * 0.044715
MFMA = "v_mfma_f32_32x32x16_bf16"

STAMP = 0x1580000
INSTR = False
import os
ABL = set(os.environ.get('ABL', '').split(','))
def stamp(k, i):
    if not INSTR: return
    k.e(f"s_memrealtime s[96:97]\ns_memtime s[98:99]\ns_waitcnt lgkmcnt(0)\nv_writelane_b32 v{k.svreg}, s96, {i}\nv_writelane_b32 v{k.svreg}, s98, {16+i}")
    k.lg = []
def cstamp(k, i):
    return
    k.e(f"s_memtime s[96:97]\ns_waitcnt lgkmcnt(0)\nv_writelane_b32 v{k.svreg}, s96, {i}")
    k.lg = []
def stamp_out(k, kidx, sws, swave):
    if not INSTR: return
    k.e(f"""s_lshl_b32 s98, s2, 3
    s_add_u32 s98, s98, s{swave}
    s_lshl_b32 s98, s98, 7
    s_add_u32 s98, s98, {STAMP + kidx * 262144}
    v_mbcnt_lo_u32_b32 v{k.svreg+1}, -1, 0
    v_mbcnt_hi_u32_b32 v{k.svreg+1}, -1, v{k.svreg+1}
    v_lshlrev_b32 v{k.svreg+1}, 2, v{k.svreg+1}
    s_mov_b64 exec, 0xffffffff
    buffer_store_dword v{k.svreg}, v{k.svreg+1}, s[{sws}:{sws+3}], s98 offen""")
    if "dbgout" in ABL:
        lab = f"Ldbg{len(k.lines)}"
        k.e(f"""s_lshl_b32 s98, s2, 3
        s_add_u32 s98, s98, s{swave}
        s_cmp_lg_u32 s98, {int(os.environ.get("DBGW", "800"))}
        s_cbranch_scc1 {lab}
        s_load_dwordx2 s[96:97], s[0:1], 64
        s_waitcnt lgkmcnt(0)
        s_mov_b32 s98, 64
        s_mov_b32 s99, {SRD3}
        v_readlane_b32 s100, v{k.svreg}, 0
        s_nop 4
        v_subrev_u32 v{k.svreg}, s100, v{k.svreg}
        buffer_store_dword v{k.svreg}, v{k.svreg+1}, s[96:99], 0 offen""")
        k.label(lab)

def srd(k, d, lo, hi, size):
    k.e(f"s_mov_b32 s{d}, {lo}\ns_mov_b32 s{d+1}, {hi}\ns_mov_b32 s{d+2}, {size}\ns_mov_b32 s{d+3}, {SRD3}")

def gen_k1():
    k = K("k1_kernel")
    sX, sG, sU, sQ, sWS, sT = 24, 28, 32, 36, 40, 44
    CG, RB, W = 50, 51, 53
    X0, ACC0 = 32, 144
    AACC, AW = 0, 48
    NW = 8
    VADDR = 16
    vG, vU, vQ, vL16 = 26, 27, 28, 29
    STG = 20480
    NSLOT = 7
    k.svreg = 14
    if INSTR: k.e("v_mov_b32 v14, 0")
    k.e("s_cmp_ge_u32 s2, 256\ns_cbranch_scc1 L1_end")
    stamp(k, 0); cstamp(k, 6)
    k.e("s_load_dwordx16 s[4:19], s[0:1], 0\ns_load_dwordx2 s[20:21], s[0:1], 72")
    k.e(f"""s_and_b32 s{CG}, s2, 7
    s_lshr_b32 s{RB}, s2, 3
    s_and_b32 s52, s{RB}, 1
    s_lshl_b32 s{CG}, s{CG}, 1
    s_add_u32 s{CG}, s{CG}, s52
    s_lshr_b32 s{RB}, s{RB}, 1
    v_lshrrev_b32 v1, 6, v0
    v_and_b32 v2, 63, v0
    v_readfirstlane_b32 s{W}, v1
    v_and_b32 v3, 31, v2
    v_lshrrev_b32 v4, 5, v2""")
    k.e(f"""s_lshl_b32 s54, s{RB}, 2
    s_add_u32 s54, s54, s{W}
    s_lshl_b32 s55, s54, 5
    v_add_u32 v5, s55, v3
    v_mul_u32_u24 v5, 896, v5
    v_lshl_add_u32 v5, v4, 4, v5
    v_lshlrev_b32 v{vL16}, 4, v2""")
    k.e(f"""s_sub_u32 s56, s{RB}, 14
    s_cmp_lt_u32 s{RB}, 14
    s_cselect_b32 s56, s{RB}, s56
    s_lshl_b32 s57, s56, 6""")
    k.e(f"""s_sub_u32 s65, s{CG}, 14
    s_mul_i32 s65, s65, 560
    s_add_u32 s65, s65, 1568
    s_add_u32 s66, s65, 256
    s_add_u32 s67, s65, 448
    s_lshl_b32 s68, s{CG}, 8
    s_mul_i32 s69, s{CG}, 112
    s_cmp_lt_u32 s{CG}, 14
    s_movk_i32 s58, 2688
    s_cselect_b32 s58, 3584, s58
    s_cselect_b32 s59, s68, s65
    s_cselect_b32 s60, s68, s66
    s_cselect_b32 s61, s69, s67
    s_cselect_b32 s62, 32, 56
    s_cselect_b32 s63, 256, 32
    s_cselect_b32 s64, 1, 0""")
    k.e("s_waitcnt lgkmcnt(0)")
    stamp(k, 1)
    srd(k, sX, "s4", "s5", 1835008)
    for i in range(14):
        k.vmem(f"buffer_load_dwordx4 {vr(X0+8*i,4)}, v5, s[{sX}:{sX+3}], s57 offen", "x")
        k.vmem(f"buffer_load_dwordx4 {vr(X0+8*i+4,4)}, v5, s[{sX}:{sX+3}], s57 offen offset:32", "x")
        if i < 13:
            k.e("s_add_u32 s57, s57, 64\ns_cmp_eq_u32 s57, 896\ns_cselect_b32 s57, 0, s57")
    k.e(f"""s_cmp_lt_u32 s{CG}, 14
    s_cselect_b32 s{sG}, s12, s6
    s_cselect_b32 s{sG+1}, s13, s7
    s_mov_b32 s{sG+2}, 1204224
    s_cselect_b32 s{sG+2}, 1605632, s{sG+2}
    s_mov_b32 s{sG+3}, {SRD3}
    s_cselect_b32 s{sU}, s14, s6
    s_cselect_b32 s{sU+1}, s15, s7
    s_mov_b32 s{sU+2}, s{sG+2}
    s_mov_b32 s{sU+3}, {SRD3}""")
    srd(k, sQ, "s6", "s7", 1204224)
    srd(k, sWS, "s20", "s21", WS_SIZE)
    k.e(f"""s_lshl_b32 s65, s{W}, 3
    v_lshrrev_b32 v6, 4, v2
    v_and_b32 v7, 15, v2
    v_add_u32 v8, s65, v6
    v_mul_lo_u32 v8, v8, s58
    v_lshlrev_b32 v9, 2, v6
    v_xor_b32 v10, v7, v9
    v_lshl_add_u32 v{vG}, v10, 4, v8
    v_add_u32 v{vG}, s59, v{vG}
    s_lshl_b32 s66, s64, 1
    v_xor_b32 v10, s66, v10
    v_lshl_add_u32 v{vU}, v10, 4, v8
    v_add_u32 v{vU}, s60, v{vU}
    v_lshrrev_b32 v6, 3, v2
    v_and_b32 v7, 7, v2
    v_add_u32 v8, s65, v6
    v_mul_u32_u24 v8, 2688, v8
    v_and_b32 v9, 2, v6
    v_lshlrev_b32 v9, 1, v9
    v_xor_b32 v10, v7, v9
    v_lshl_add_u32 v{vQ}, v10, 4, v8
    v_add_u32 v{vQ}, s61, v{vQ}
    s_mul_i32 s70, s{W}, 5120
    s_lshl_b32 s71, s58, 5
    s_lshl_b32 s72, s58, 2""")
    def dma_stage(i):
        slot = (i % NSLOT) * STG
        k.e(f"""s_mul_i32 s73, s56, s71
        s_add_u32 s74, s73, s72
        s_mul_i32 s75, s56, 86016
        s_add_u32 m0, s70, {slot}""")
        k.e("s_add_u32 s56, s56, 1")
        k.vmem(f"buffer_load_dwordx4 v{vG}, s[{sG}:{sG+3}], s73 offen lds", ("st", i))
        k.e(f"s_add_u32 m0, s70, {slot+1024}\ns_cmp_eq_u32 s56, 14")
        k.vmem(f"buffer_load_dwordx4 v{vG}, s[{sG}:{sG+3}], s74 offen lds", ("st", i))
        k.e(f"s_cselect_b32 s56, 0, s56\ns_add_u32 m0, s70, {slot+2048}\ns_nop 0")
        k.vmem(f"buffer_load_dwordx4 v{vU}, s[{sU}:{sU+3}], s73 offen lds", ("st", i))
        k.e(f"s_add_u32 m0, s70, {slot+3072}\ns_nop 0")
        k.vmem(f"buffer_load_dwordx4 v{vU}, s[{sU}:{sU+3}], s74 offen lds", ("st", i))
        k.e(f"s_add_u32 m0, s70, {slot+4096}\ns_nop 0")
        k.vmem(f"buffer_load_dwordx4 v{vQ}, s[{sQ}:{sQ+3}], s75 offen lds", ("st", i))
    for i in range(3):
        dma_stage(i)
    TL = ACC0 + 96
    k.e(f"""s_lshl_b32 s76, s2, 2
    s_add_u32 s76, s76, s{W}
    s_sub_u32 s77, s76, 784
    s_cmp_lt_u32 s76, 784
    s_cselect_b32 s77, s76, s77
    s_cselect_b32 s{sT}, s16, s8
    s_cselect_b32 s{sT+1}, s17, s9
    s_mov_b32 s{sT+2}, 401408
    s_cselect_b32 s{sT+2}, 1605632, s{sT+2}
    s_mov_b32 s{sT+3}, {SRD3}
    s_mul_i32 s78, s77, 9363
    s_lshr_b32 s78, s78, 16
    s_mul_i32 s79, s78, 7
    s_sub_u32 s79, s77, s79
    s_lshl_b32 s80, s78, 4
    s_lshr_b32 s81, s78, 1
    s_mul_i32 s81, s81, 28
    s_and_b32 s82, s78, 1
    s_lshl_b32 s83, s82, 4
    s_add_u32 s81, s81, s83
    s_mul_i32 s84, s79, 229376
    s_add_u32 s84, s84, {WDF}
    s_lshl_b32 s85, s79, 16
    s_add_u32 s85, s85, {WOF}
    s_cmp_lt_u32 s76, 784
    s_cselect_b32 s80, s80, s81
    s_cselect_b32 s84, s84, s85
    s_cselect_b32 s82, 0, s82
    s_lshl_b32 s85, s78, 11
    s_add_u32 s84, s84, s85
    s_cmp_lt_u32 s76, 1008
    s_cselect_b32 s84, s84, 0x7ff00000
    s_mul_i32 s80, s80, 896
    s_lshl_b32 s85, s79, 7
    s_add_u32 s80, s80, s85
    s_lshl_b32 s82, s82, 24""")
    k.e(f"""v_bfe_u32 v6, v3, 2, 1
    v_lshlrev_b32 v6, 4, v6
    v_lshrrev_b32 v7, 3, v3
    v_lshl_add_u32 v6, v7, 2, v6
    v_and_b32 v7, 3, v3
    v_add_u32 v6, v6, v7
    v_lshlrev_b32 v6, 2, v6
    v_mul_u32_u24 v7, 3584, v4
    v_add_u32 v6, v6, v7
    v_mul_lo_u32 v7, v4, s82
    v_add_u32 v7, v7, v6
    v_add_u32 v7, 7168, v7""")
    for j in range(8):
        k.vmem(f"buffer_load_dword v{TL+j}, v{6 if j < 4 else 7}, s[{sT}:{sT+3}], s80 offen offset:{(j&3)*896}", "T")
    for i in range(3, 5):
        dma_stage(i)
    k.e(f"""v_bfe_u32 v6, v2, 4, 1
    v_bfe_u32 v7, v2, 2, 2
    v_and_b32 v8, 3, v2
    v_mul_lo_u32 v9, v6, s63
    v_lshl_add_u32 v9, v8, 3, v9
    v_mul_u32_u24 v10, 5120, v4
    v_lshl_add_u32 v10, v7, 8, v10""")
    for p in range(8):
        k.e(f"""s_mul_i32 s65, s62, {p}
        v_add_u32 v11, s65, v9
        v_lshrrev_b32 v12, 8, v11
        v_and_b32 v11, 255, v11
        v_and_b32 v13, s64, v12
        v_lshl_add_u32 v13, v7, 1, v13
        v_lshlrev_b32 v13, 5, v13
        v_xor_b32 v11, v11, v13
        v_lshl_add_u32 v11, v12, 11, v11
        v_add_u32 v{VADDR+p}, v11, v10""")
    k.e(f"""v_lshlrev_b32 v9, 5, v6
    v_lshl_add_u32 v9, v8, 3, v9
    v_mul_u32_u24 v10, 5120, v4
    v_lshl_add_u32 v10, v7, 7, v10
    v_add_u32 v10, 4096, v10
    v_and_b32 v13, 2, v7
    v_lshlrev_b32 v13, 5, v13
    v_xor_b32 v11, v9, v13
    v_add_u32 v{VADDR+8}, v11, v10
    v_add_u32 v9, 56, v9
    v_xor_b32 v11, v9, v13
    v_add_u32 v{VADDR+9}, v11, v10""")
    k.e("s_mov_b32 s86, 0x3f803f80\ns_mov_b32 s87, 0x00003f80\ns_mov_b32 s88, 0x3f800000")
    k.e("v_mov_b32 v6, 0\nv_mov_b32 v7, 0\nv_mov_b32 v8, 0\nv_mov_b32 v9, 0")
    stamp(k, 8)
    k.wait_vm("x")
    stamp(k, 2)
    for i in range(112):
        k.e(f"v_dot2c_f32_bf16 v{6+(i&3)}, s86, v{X0+i}")
    for i in range(5, 7):
        dma_stage(i)
    k.e("""v_add_f32 v6, v6, v7
    v_add_f32 v8, v8, v9
    v_add_f32 v6, v6, v8
    v_mov_b32 v7, v6
    s_nop 1
    v_permlane32_swap_b32 v6, v7
    v_add_f32 v6, v6, v7""")
    k.e(f"v_mul_f32 v30, {hex(f2u(-1.0/448))}, v6")
    k.e("v_mov_b32 v6, 0\nv_mov_b32 v7, 0\nv_mov_b32 v8, 0\nv_mov_b32 v9, 0")
    TMP = ACC0
    for b in range(14):
        for i in range(8):
            r = X0 + 8*b + i
            k.e(f"v_dot2_f32_bf16 v{TMP+2*i}, v{r}, s87, v30\nv_dot2_f32_bf16 v{TMP+2*i+1}, v{r}, s88, v30")
        if b > 0:
            for i in range(8):
                r = X0 + 8*(b-1) + i
                k.e(f"v_dot2c_f32_bf16 v{6+(i&3)}, v{r}, v{r}")
        else:
            k.e("s_nop 1")
        for i in range(8):
            k.e(f"v_cvt_pk_bf16_f32 v{X0+8*b+i}, v{TMP+2*i}, v{TMP+2*i+1}")
    for i in range(8):
        r = X0 + 8*13 + i
        k.e(f"v_dot2c_f32_bf16 v{6+(i&3)}, v{r}, v{r}")
    k.wait_vm("T")
    k.e("s_mov_b32 s89, 0x05040100\ns_mov_b32 s90, 0x07060302")
    for d in range(4):
        k.e(f"v_perm_b32 v{TL+8+d}, v{TL+2*d+1}, v{TL+2*d}, s89")
        k.e(f"v_perm_b32 v{TL+12+d}, v{TL+2*d+1}, v{TL+2*d}, s90")
    k.vmem(f"buffer_store_dwordx4 {vr(TL+8,4)}, v{vL16}, s[{sWS}:{sWS+3}], s84 offen", "Ts")
    k.vmem(f"buffer_store_dwordx4 {vr(TL+12,4)}, v{vL16}, s[{sWS}:{sWS+3}], s84 offen offset:1024", "Ts")
    k.e(f"""v_add_f32 v6, v6, v7
    v_add_f32 v8, v8, v9
    v_add_f32 v6, v6, v8
    v_mov_b32 v7, v6
    v_mov_b32 v8, {hex(f2u(1e-5))}
    s_mov_b32 s91, {hex(f2u(1.0/448))}
    v_permlane32_swap_b32 v6, v7
    v_add_f32 v6, v6, v7
    v_fma_f32 v30, v6, s91, v8
    v_rsq_f32 v31, v30""")
    stamp(k, 3)
    def acc(p):
        return vr(ACC0 + 16*p, 16) if p < 7 else ar(AACC + 16*(p-7), 16)
    items = [(st, s2, p) for st in range(14) for s2 in range(2) for p in range(10)]
    D = 6
    cur_base = [0]
    def issue_reads(n):
        st, s2, p = items[n]
        slot = st % NSLOT
        if s2 == 0 and p == 0:
            if "k1nowait" not in ABL:
                k.wait_vm(("st", st))
                k.e("s_barrier")
            if 2 <= st <= 8 and "k1nodma" not in ABL:
                dma_stage(st + 5)
            base = (slot // 3) * 3 * STG
            if base != cur_base[0]:
                delta = base - cur_base[0]
                for q in range(10):
                    if delta > 0: k.e(f"v_add_u32 v{VADDR+q}, {delta}, v{VADDR+q}")
                    else: k.e(f"v_subrev_u32 v{VADDR+q}, {-delta}, v{VADDR+q}")
                cur_base[0] = base
        off = slot * STG - cur_base[0] + s2 * 10240
        h2 = 1024 if p < 8 else 512
        fr = AW + 4 * (n % NW)
        k.ds(f"ds_read_b64_tr_b16 {ar(fr,2)}, v{VADDR+p} offset:{off}", n)
        k.ds(f"ds_read_b64_tr_b16 {ar(fr+2,2)}, v{VADDR+p} offset:{off+h2}", n)
    for n in range(D):
        issue_reads(n)
    for n, (st, s2, p) in enumerate(items):
        k.wait_lg(n)
        ks = 2*st + s2
        c = "0" if ks == 0 else acc(p)
        k.e(f"{MFMA} {acc(p)}, {ar(AW+4*(n%NW),4)}, {vr(X0+4*ks,4)}, {c}")
        if n + D < len(items):
            issue_reads(n + D)
    stamp(k, 4)
    k.e("s_barrier")
    k.e("s_mov_b32 s92, 0\ns_mov_b32 s93, -1")
    k.e("s_nop 7\ns_nop 2")
    for i in range(48):
        k.e(f"v_accvgpr_read_b32 v{X0+i}, a{AACC+i}")
    def accv(p):
        return ACC0 + 16*p if p < 7 else X0 + 16*(p-7)
    TE = X0 + 48
    def qkv_pack(p, sTidx):
        A = accv(p)
        k.e(f"""s_cmp_lt_u32 s{sTidx}, 16
        s_cselect_b32 s65, {hex(f2u(CQ))}, 1.0
        s_cselect_b32 s66, 0, 0x3f80
        v_mul_f32 v6, s65, v31
        v_mov_b32 v8, s66
        v_mov_b32 v7, v6""")
        for i in range(8):
            k.e(f"v_pk_mul_f32 {vr(A+2*i,2)}, {vr(A+2*i,2)}, v[6:7]")
        for i in range(8):
            k.e(f"v_cvt_pk_bf16_f32 v{A+i}, v{A+2*i}, v{A+2*i+1}")
        k.e(f"v_cndmask_b32 v{A+6}, v{A+6}, v8, s[92:93]\nv_cndmask_b32 v{A+7}, v{A+7}, 0, s[92:93]")
    def qkv_store(p, sTidx):
        A = accv(p)
        k.e(f"s_lshl_b32 s65, s{sTidx}, 17\ns_lshl_b32 s66, s54, 11\ns_add_u32 s65, s65, s66")
        k.e(f"buffer_store_dwordx4 {vr(A,4)}, v{vL16}, s[{sWS}:{sWS+3}], s65 offen")
        k.e(f"buffer_store_dwordx4 {vr(A+4,4)}, v{vL16}, s[{sWS}:{sWS+3}], s65 offen offset:1024")
    k.e(f"s_cmp_ge_u32 s{CG}, 14\ns_cbranch_scc1 L1_type2")
    k.e(f"s_lshl_b32 s94, s{CG}, 1")
    qkv_pack(8, 94); qkv_store(8, 94)
    k.e("s_add_u32 s94, s94, 1")
    qkv_pack(9, 94); qkv_store(9, 94)
    k.e(f"""v_mul_f32 v8, {hex(f2u(GK1))}, v31
    v_mul_f32 v10, v31, v31
    v_mul_f32 v10, v10, v31
    v_mul_f32 v10, {hex(f2u(GK2))}, v10
    v_mov_b32 v9, v8
    v_mov_b32 v11, v10
    v_mov_b32 v12, v30
    v_mov_b32 v13, v30
    s_lshr_b32 s65, s54, 1
    s_mul_i32 s65, s65, 229376
    s_and_b32 s66, s54, 1
    s_lshl_b32 s66, s66, 10
    s_add_u32 s65, s65, s66
    s_lshl_b32 s66, s{CG}, 14
    s_add_u32 s65, s65, s66
    s_add_u32 s65, s65, {HF}""")
    for p in range(8):
        A = accv(p)
        T = TE + 16 * (p & 1)
        for i in range(4): k.e(f"v_pk_mul_f32 {vr(T+2*i,2)}, {vr(A+2*i,2)}, {vr(A+2*i,2)}")
        for i in range(4): k.e(f"v_pk_fma_f32 {vr(T+2*i,2)}, {vr(T+2*i,2)}, v[10:11], v[8:9]")
        for i in range(4): k.e(f"v_pk_mul_f32 {vr(T+2*i,2)}, {vr(T+2*i,2)}, {vr(A+2*i,2)}")
        for i in range(8): k.e(f"v_exp_f32 v{T+i}, v{T+i}")
        for i in range(4): k.e(f"v_pk_mul_f32 {vr(A+2*i,2)}, {vr(A+2*i,2)}, {vr(A+8+2*i,2)}")
        for i in range(4): k.e(f"v_pk_fma_f32 {vr(T+2*i,2)}, {vr(T+2*i,2)}, v[12:13], v[12:13]")
        for i in range(8): k.e(f"v_rcp_f32 v{T+i}, v{T+i}")
        k.e("s_nop 0")
        for i in range(4): k.e(f"v_pk_mul_f32 {vr(A+2*i,2)}, {vr(A+2*i,2)}, {vr(T+2*i,2)}")
        for i in range(4): k.e(f"v_cvt_pk_bf16_f32 v{T+8+i}, v{A+2*i}, v{A+2*i+1}")
        k.e(f"buffer_store_dwordx4 {vr(T+8,4)}, v{vL16}, s[{sWS}:{sWS+3}], s65 offen offset:{2048*(p&1)}")
        if p & 1: k.e("s_add_u32 s65, s65, 4096")
    stamp(k, 9)
    if INSTR: k.e("s_waitcnt vmcnt(0)")
    stamp(k, 5); cstamp(k, 7); stamp_out(k, 0, sWS, W)
    k.e("s_endpgm")
    k.label("L1_type2")
    k.e(f"s_sub_u32 s94, s{CG}, 14\ns_mul_i32 s94, s94, 10\ns_add_u32 s94, s94, 28")
    for p in range(10):
        qkv_pack(p, 94)
    k.e(f"""s_mul_i32 s65, s{W}, 20480
    v_lshlrev_b32 v6, 6, v3
    v_lshl_add_u32 v6, v4, 3, v6
    v_add_u32 v6, s65, v6
    v_bfe_u32 v7, v2, 2, 2
    v_lshl_add_u32 v7, v4, 2, v7
    v_lshlrev_b32 v7, 6, v7
    v_bfe_u32 v8, v2, 4, 1
    v_lshl_add_u32 v7, v8, 5, v7
    v_and_b32 v8, 3, v2
    v_lshl_add_u32 v7, v8, 3, v7
    v_add_u32 v7, s65, v7""")
    def vtr_w(p):
        A = accv(p)
        for g in range(4):
            k.e(f"ds_write_b64 v6, {vr(A+2*g,2)} offset:{p*2048+g*16}")
    def vtr_r(p):
        A = accv(p)
        for t in range(2):
            for b in range(2):
                k.e(f"ds_read_b64_tr_b16 {vr(A+4*t+2*b,2)}, v7 offset:{p*2048+(16*t+8*b)*64}")
    for p in range(4, 10): vtr_w(p)
    k.e(f"s_cmp_eq_u32 s{CG}, 14\ns_cbranch_scc1 L1_t2b")
    for p in range(4): vtr_w(p)
    k.e("s_waitcnt lgkmcnt(0)")
    for p in range(4): vtr_r(p)
    k.label("L1_t2b")
    k.e("s_waitcnt lgkmcnt(0)")
    for p in range(4, 10): vtr_r(p)
    k.e("s_waitcnt lgkmcnt(0)")
    for p in range(10):
        qkv_store(p, 94)
        k.e("s_add_u32 s94, s94, 1")
    stamp(k, 9)
    if INSTR: k.e("s_waitcnt vmcnt(0)")
    stamp(k, 5); cstamp(k, 7); stamp_out(k, 0, sWS, W)
    k.label("L1_end")
    k.e("s_endpgm")
    return k, 256, 80, NSLOT * STG

def gemm_exchange(k, ACC, lds_base, vW, vRd, sw):
    for t in range(4):
        for q in range(4):
            k.e(f"ds_write_b128 v{vW}, {vr(ACC+16*t+4*q,4)} offset:{t*4096+q*1024}")

def gen_k2():
    k = K("k2_kernel")
    sK, sV, sWS, sH, sWd, sX = 24, 28, 32, 36, 40, 44
    OX, MX, GX = 0, 65536, 69632
    k.svreg = 230
    if INSTR: k.e("v_mov_b32 v230, 0")
    k.e("s_cmp_ge_u32 s2, 256\ns_cbranch_scc1 L2_end")
    stamp(k, 0); cstamp(k, 6)
    k.e("s_load_dwordx2 s[4:5], s[0:1], 0\ns_load_dwordx2 s[20:21], s[0:1], 72")
    k.e("""v_lshrrev_b32 v1, 6, v0
    v_and_b32 v2, 63, v0
    v_readfirstlane_b32 s53, v1
    s_and_b32 s50, s2, 7
    s_lshr_b32 s51, s2, 3
    v_lshlrev_b32 v3, 4, v2
    s_cmp_ge_u32 s53, 4
    s_cbranch_scc1 L2_gemm""")
    Q0, O0, KR, VR, S0, P0, M0 = 8, 40, 104, 136, 168, 200, 216
    TM = 220
    k.e("""s_setprio 1
    s_lshl_b32 s54, s50, 1
    s_and_b32 s55, s51, 1
    s_add_u32 s54, s54, s55
    s_lshr_b32 s55, s51, 1
    s_lshl_b32 s56, s54, 17
    s_lshl_b32 s57, s53, 15
    s_add_u32 s57, s57, s56
    s_add_u32 s57, s57, 0x200000
    s_lshl_b32 s58, s55, 13
    s_add_u32 s58, s58, s56
    s_waitcnt lgkmcnt(0)""")
    k.e(f"""s_add_u32 s{sK}, s20, s57
    s_addc_u32 s{sK+1}, s21, 0
    s_mov_b32 s{sK+2}, 32768
    s_mov_b32 s{sK+3}, {SRD3}
    s_add_u32 s{sV}, s{sK}, 0x200000
    s_addc_u32 s{sV+1}, s{sK+1}, 0
    s_mov_b32 s{sV+2}, 32768
    s_mov_b32 s{sV+3}, {SRD3}""")
    srd(k, sWS, "s20", "s21", WS_SIZE)
    def ldK(b, off, so):
        k.e(f"buffer_load_dwordx4 {vr(KR+8*b,4)}, v3, s[{sK}:{sK+3}], {so} offen offset:{off}")
        k.e(f"buffer_load_dwordx4 {vr(KR+8*b+4,4)}, v3, s[{sK}:{sK+3}], {so} offen offset:{off+1024}")
    def ldV(b, off, so):
        k.e(f"buffer_load_dwordx4 {vr(VR+8*b,4)}, v3, s[{sV}:{sV+3}], {so} offen offset:{off}")
        k.e(f"buffer_load_dwordx4 {vr(VR+8*b+4,4)}, v3, s[{sV}:{sV+3}], {so} offen offset:{off+1024}")
    k.e("s_add_u32 s59, s58, 4096\ns_mov_b32 s60, 4096")
    ldK(0, 0, "0")
    for qt in range(4):
        so = "s58" if qt < 2 else "s59"
        k.e(f"buffer_load_dwordx4 {vr(Q0+8*qt,4)}, v3, s[{sWS}:{sWS+3}], {so} offen offset:{(qt&1)*2048}")
        k.e(f"buffer_load_dwordx4 {vr(Q0+8*qt+4,4)}, v3, s[{sWS}:{sWS+3}], {so} offen offset:{(qt&1)*2048+1024}")
    ldV(0, 0, "0"); ldK(1, 2048, "0"); ldV(1, 2048, "0"); ldK(2, 0, "s60"); ldV(2, 0, "s60"); ldK(3, 2048, "s60")
    for i in range(64): k.e(f"v_mov_b32 v{O0+i}, 0")
    for i in range(8): k.e(f"v_mov_b32 v{VR+24+i}, 0\nv_mov_b32 v{P0+8+i}, 0")
    k.e("s_mov_b32 s92, 0\ns_mov_b32 s93, -1\ns_mov_b32 s61, 0x42800000\ns_mov_b32 s62, 0xffff0000")
    stamp(k, 1)
    k.e("s_waitcnt vmcnt(12)")
    stamp(k, 2)
    def qk(kb, qt, sb):
        return [f"{MFMA} {vr(S0+16*sb,16)}, {vr(KR+8*kb,4)}, {vr(Q0+8*qt,4)}, 0",
                f"{MFMA} {vr(S0+16*sb,16)}, {vr(KR+8*kb+4,4)}, {vr(Q0+8*qt+4,4)}, {vr(S0+16*sb,16)}"]
    def maxops(sb, d):
        S = S0 + 16*sb
        ops = [f"v_max3_f32 v{d}, v{S}, v{S+1}, v{S+2}", f"v_max3_f32 v{d+1}, v{S+3}, v{S+4}, v{S+5}"]
        for i in range(2):
            ops += [f"v_max3_f32 v{d}, v{d}, v{S+6+4*i}, v{S+7+4*i}", f"v_max3_f32 v{d+1}, v{d+1}, v{S+8+4*i}, v{S+9+4*i}"]
        ops += [f"v_max3_f32 v{d}, v{d}, v{S+14}, v{S+15}", f"v_max_f32 v{d}, v{d}, v{d+1}"]
        return ops
    for qt in range(4):
        for o in qk(0, qt, qt & 1): k.e(o)
        k.e("s_nop 7\ns_nop 3")
        for o in maxops(qt & 1, TM): k.e(o)
        k.e(f"""v_mov_b32 v{TM+1}, v{TM}
        s_nop 1
        v_permlane32_swap_b32 v{TM}, v{TM+1}
        v_max_f32 v{TM}, v{TM}, v{TM+1}
        v_cvt_pk_bf16_f32 v{TM+1}, -v{TM}, 0
        v_lshlrev_b32 v{M0+qt}, 16, v{TM+1}
        v_cndmask_b32 v{Q0+8*qt+6}, v{Q0+8*qt+6}, v{TM+1}, s[92:93]""")
    k.e("s_nop 1")
    for o in qk(0, 0, 0): k.e(o)
    k.e("s_mov_b32 s63, 8192\ns_mov_b32 s64, 6144\ns_mov_b32 s65, 4\ns_nop 7\ns_nop 0")
    stamp(k, 3)
    k.label("L2_loop")
    stubs = []
    for kt in range(4):
        for qt in range(4):
            n = 4*kt + qt
            sb = n & 1
            nkt, nqt = (kt + (qt == 3)) % 4, (qt + 1) % 4
            pkt, pqt = (kt - (qt == 0)) % 4, (qt - 1) % 4
            S = S0 + 16*sb; P = P0 + 8*sb; PP = P0 + 8*(1-sb)
            m = qk(nkt, nqt, 1 - sb)
            pv = [f"{MFMA} {vr(O0+16*pqt,16)}, {vr(VR+8*pkt+4*t,4)}, {vr(PP+4*t,4)}, {vr(O0+16*pqt,16)}" for t in range(2)]
            ex = [f"v_exp_f32 v{S+i}, v{S+i}" for i in range(16)]
            cv = [f"v_cvt_pk_bf16_f32 v{P+i}, v{S+2*i}, v{S+2*i+1}" for i in range(8)]
            mx = maxops(1 - sb, TM)
            if qt == 3: k.e("s_waitcnt vmcnt(10)")
            k.e(m[0])
            if qt == 3:
                ldK(kt, 0, "s63"); k.e("s_add_u32 s63, s63, 2048")
            for o in ex[0:4]: k.e(o)
            k.e(m[1])
            for o in ex[4:8] + cv[0:2]: k.e(o)
            if qt == 1: k.e("s_waitcnt vmcnt(10)")
            k.e(pv[0])
            if qt == 1:
                ldV((kt + 3) % 4, 0, "s64"); k.e("s_add_u32 s64, s64, 2048")
            for o in ex[8:12] + cv[2:4]: k.e(o)
            k.e(pv[1])
            for o in ex[12:16] + cv[4:6] + mx[0:4] + cv[6:8] + mx[4:8]: k.e(o)
            if "k2nocheck" not in ABL:
                k.e(f"v_cmp_lt_f32 vcc, s61, v{TM}")
                k.e(f"s_cbranch_vccnz L2_stub{n}")
            k.label(f"L2_ret{n}")
            stubs.append((n, nqt))
    k.e("s_sub_u32 s65, s65, 1\ns_cmp_lg_u32 s65, 0\ns_cbranch_scc1 L2_loop")
    for t in range(2):
        k.e(f"{MFMA} {vr(O0+48,16)}, {vr(VR+24+4*t,4)}, {vr(P0+8+4*t,4)}, {vr(O0+48,16)}")
    stamp(k, 4)
    k.e(f"""s_lshl_b32 s66, s53, 14
    v_add_u32 v4, s66, v3
    s_lshl_b32 s67, s53, 10
    v_lshlrev_b32 v5, 2, v2
    v_add_u32 v6, s67, v5
    v_add_u32 v6, {MX}, v6""")
    for qt in range(4):
        k.e(f"ds_write_b32 v6, v{M0+qt} offset:{qt*256}")
    k.e("s_nop 3")
    for qt in range(4):
        for q in range(4):
            k.e(f"ds_write_b128 v4, {vr(O0+16*qt+4*q,4)} offset:{qt*4096+q*1024}")
    k.e(f"""s_lshl_b32 s66, s53, 12
    v_add_u32 v4, s66, v3
    s_lshl_b32 s67, s53, 8
    v_add_u32 v6, s67, v5
    v_add_u32 v6, {MX}, v6
    s_waitcnt lgkmcnt(0)
    s_barrier""")
    for w in range(4):
        k.e(f"ds_read_b32 v{M0+w}, v6 offset:{w*1024}")
    for w in range(4):
        for q in range(4):
            k.e(f"ds_read_b128 {vr(O0+16*w+4*q,4)}, v4 offset:{w*16384+q*1024}")
    k.e(f"""s_waitcnt lgkmcnt(15)
    v_min3_f32 v{TM}, v{M0}, v{M0+1}, v{M0+2}
    v_min_f32 v{TM}, v{TM}, v{M0+3}""")
    for w in range(4):
        k.e(f"v_sub_f32 v{M0+w}, v{TM}, v{M0+w}")
    for w in range(4):
        k.e(f"v_exp_f32 v{M0+w}, v{M0+w}")
    k.e("s_waitcnt lgkmcnt(0)")
    for i in range(16): k.e(f"v_mul_f32 v{O0+i}, v{O0+i}, v{M0}")
    for w in range(1, 4):
        for i in range(16): k.e(f"v_fmac_f32 v{O0+i}, v{O0+16*w+i}, v{M0+w}")
    k.e(f"""v_mov_b32 v{TM}, v{O0+12}
    v_mov_b32 v{TM+1}, v{O0+12}
    s_lshl_b32 s66, s55, 2
    s_add_u32 s66, s66, s53
    v_permlane32_swap_b32 v{TM}, v{TM+1}
    v_rcp_f32 v{TM}, v{TM+1}
    s_lshr_b32 s67, s66, 1
    s_lshl_b32 s67, s67, 16
    s_and_b32 s66, s66, 1
    s_lshl_b32 s66, s66, 10
    s_add_u32 s67, s67, s66
    s_lshl_b32 s66, s54, 12
    s_add_u32 s67, s67, s66
    s_add_u32 s67, s67, {OF}""")
    for i in range(16): k.e(f"v_mul_f32 v{O0+i}, v{O0+i}, v{TM}")
    for i in range(8): k.e(f"v_cvt_pk_bf16_f32 v{P0+i}, v{O0+2*i}, v{O0+2*i+1}")
    k.e(f"buffer_store_dwordx4 {vr(P0,4)}, v3, s[{sWS}:{sWS+3}], s67 offen")
    k.e(f"buffer_store_dwordx4 {vr(P0+4,4)}, v3, s[{sWS}:{sWS+3}], s67 offen offset:2048")
    if INSTR: k.e("s_waitcnt vmcnt(0)")
    stamp(k, 5); cstamp(k, 7); stamp_out(k, 1, sWS, 53)
    k.e("s_endpgm")
    for n, nqt in stubs:
        k.label(f"L2_stub{n}")
        k.e(f"s_call_b64 s[70:71], L2_rare{nqt}\ns_branch L2_ret{n}")
    for qt in range(4):
        sb = qt & 1
        S = S0 + 16*sb
        k.label(f"L2_rare{qt}")
        k.e(f"""v_mov_b32 v{TM+1}, v{TM}
        s_nop 1
        v_permlane32_swap_b32 v{TM}, v{TM+1}
        v_max3_f32 v{TM}, v{TM}, v{TM+1}, 0
        v_sub_f32 v{TM}, v{M0+qt}, v{TM}
        v_cvt_pk_bf16_f32 v{TM+1}, v{TM}, 0
        v_lshlrev_b32 v{TM}, 16, v{TM+1}
        v_cndmask_b32 v{Q0+8*qt+6}, v{Q0+8*qt+6}, v{TM+1}, s[92:93]
        v_sub_f32 v{TM+2}, v{TM}, v{M0+qt}
        v_mov_b32 v{M0+qt}, v{TM}
        v_exp_f32 v{TM+3}, v{TM+2}""")
        for i in range(16): k.e(f"v_add_f32 v{S+i}, v{S+i}, v{TM+2}")
        for i in range(16): k.e(f"v_mul_f32 v{O0+16*qt+i}, v{O0+16*qt+i}, v{TM+3}")
        k.e("s_nop 1\ns_setpc_b64 s[70:71]")
    k.label("L2_gemm")
    ACC, RG = 8, 72
    k.e(f"""s_cmp_ge_u32 s51, {0 if "k2nogemm" in ABL else 28}
    s_cbranch_scc1 L2_end
    s_sub_u32 s53, s53, 4
    s_mul_i32 s54, s51, 9363
    s_lshr_b32 s54, s54, 16
    s_mul_i32 s55, s54, 7
    s_sub_u32 s55, s51, s55
    s_lshl_b32 s56, s50, 2
    s_add_u32 s54, s54, s56
    s_mul_i32 s56, s53, 57344
    s_mul_i32 s57, s54, 229376
    s_add_u32 s57, s57, s56
    s_mul_i32 s58, s55, 229376
    s_add_u32 s58, s58, s56""")
    k.e(f"""s_add_u32 s57, s57, {HF}
    s_add_u32 s58, s58, {WDF}
    s_waitcnt lgkmcnt(0)
    s_add_u32 s{sH}, s20, s57
    s_addc_u32 s{sH+1}, s21, 0
    s_mov_b32 s{sH+2}, 57344
    s_mov_b32 s{sH+3}, {SRD3}
    s_add_u32 s{sWd}, s20, s58
    s_addc_u32 s{sWd+1}, s21, 0
    s_mov_b32 s{sWd+2}, 57344
    s_mov_b32 s{sWd+3}, {SRD3}""")
    srd(k, sWS, "s20", "s21", WS_SIZE)
    srd(k, sX, "s4", "s5", 1835008)
    def ldG(b, so, off):
        R = RG + 16*b
        k.e(f"buffer_load_dwordx4 {vr(R,4)}, v3, s[{sWd}:{sWd+3}], {so} offen offset:{off}")
        k.e(f"buffer_load_dwordx4 {vr(R+4,4)}, v3, s[{sWd}:{sWd+3}], {so} offen offset:{off+1024}")
        k.e(f"buffer_load_dwordx4 {vr(R+8,4)}, v3, s[{sH}:{sH+3}], {so} offen offset:{off}")
        k.e(f"buffer_load_dwordx4 {vr(R+12,4)}, v3, s[{sH}:{sH+3}], {so} offen offset:{off+1024}")
    XR = 140
    k.e(f"""v_and_b32 v4, 31, v2
    s_lshl_b32 s59, s54, 6
    s_lshr_b32 s60, s53, 1
    s_lshl_b32 s60, s60, 5
    s_add_u32 s59, s59, s60
    v_add_u32 v4, s59, v4
    v_mul_u32_u24 v4, 896, v4
    v_lshrrev_b32 v5, 5, v2
    v_lshl_add_u32 v4, v5, 6, v4
    s_lshl_b32 s59, s55, 7
    s_and_b32 s60, s53, 1
    s_lshl_b32 s60, s60, 5
    s_add_u32 s59, s59, s60
    buffer_load_dwordx4 {vr(XR,4)}, v4, s[{sX}:{sX+3}], s59 offen
    buffer_load_dwordx4 {vr(XR+4,4)}, v4, s[{sX}:{sX+3}], s59 offen offset:16
    s_mov_b32 s60, 4096""")
    ldG(0, "0", 0); ldG(1, "0", 2048); ldG(2, "s60", 0); ldG(3, "s60", 2048)
    for i in range(64): k.e(f"v_mov_b32 v{ACC+i}, 0")
    k.e("s_mov_b32 s61, 8192\ns_mov_b32 s62, 7")
    stamp(k, 3)
    k.label("L2_gloop")
    for b in range(4):
        R = RG + 16*b
        k.e("s_waitcnt vmcnt(12)")
        for u in range(2):
            for e in range(2):
                a = ACC + 16*(2*u + e)
                k.e(f"{MFMA} {vr(a,16)}, {vr(R+4*e,4)}, {vr(R+8+4*u,4)}, {vr(a,16)}")
        ldG(b, "s61", 0)
        k.e("s_add_u32 s61, s61, 2048")
    k.e("s_sub_u32 s62, s62, 1\ns_cmp_lg_u32 s62, 0\ns_cbranch_scc1 L2_gloop")
    stamp(k, 4)
    k.e(f"""s_lshl_b32 s66, s53, 14
    s_add_u32 s66, s66, {GX}
    v_add_u32 v4, s66, v3
    s_nop 7""")
    gemm_exchange(k, ACC, GX, 4, None, None)
    k.e(f"""s_lshr_b32 s66, s53, 1
    s_lshl_b32 s66, s66, 13
    s_and_b32 s67, s53, 1
    s_lshl_b32 s67, s67, 11
    s_add_u32 s66, s66, s67
    s_add_u32 s66, s66, {GX}
    v_add_u32 v4, s66, v3
    s_waitcnt lgkmcnt(0)
    s_barrier""")
    for w in range(4):
        for e in range(2):
            for q in range(2):
                k.e(f"ds_read_b128 {vr(ACC+16*w+8*e+4*q,4)}, v4 offset:{w*16384+e*4096+q*1024}")
    k.e("s_waitcnt vmcnt(0)")
    for i in range(8):
        k.e(f"v_lshlrev_b32 v{XR+8+i}, 16, v{XR+i}\nv_and_b32 v{XR+16+i}, 0xffff0000, v{XR+i}")
    k.e(f"""s_mul_i32 s66, s54, 7
    s_add_u32 s66, s66, s55
    s_lshl_b32 s66, s66, 14
    s_lshl_b32 s67, s53, 12
    s_add_u32 s66, s66, s67
    s_add_u32 s66, s66, {PART}
    s_waitcnt lgkmcnt(0)""")
    for i in range(16):
        k.e(f"v_add_f32 v{ACC+i}, v{ACC+i}, v{XR+8+i}\nv_add_f32 v{ACC+16+i}, v{ACC+16+i}, v{ACC+32+i}\nv_add_f32 v{ACC+i}, v{ACC+i}, v{ACC+48+i}")
    for i in range(16):
        k.e(f"v_add_f32 v{ACC+i}, v{ACC+i}, v{ACC+16+i}")
    for q in range(4):
        k.e(f"buffer_store_dwordx4 {vr(ACC+4*q,4)}, v3, s[{sWS}:{sWS+3}], s66 offen offset:{q*1024}")
    if INSTR: k.e("s_waitcnt vmcnt(0)\ns_add_u32 s53, s53, 4")
    stamp(k, 5); cstamp(k, 7); stamp_out(k, 1, sWS, 53)
    k.label("L2_end")
    k.e("s_endpgm")
    return k, 256, 0, GX + 65536

def gen_k3():
    k = K("k3_kernel")
    sO, sWo, sWS, sOut = 24, 28, 32, 36
    ACC, RG, PR = 8, 72, 200
    k.svreg = 220
    if INSTR: k.e("v_mov_b32 v220, 0")
    k.e("s_cmp_ge_u32 s2, 224\ns_cbranch_scc1 L3_end")
    stamp(k, 0); cstamp(k, 6)
    k.e("s_load_dwordx2 s[4:5], s[0:1], 56\ns_load_dwordx2 s[20:21], s[0:1], 72")
    k.e("""v_lshrrev_b32 v1, 6, v0
    v_and_b32 v2, 63, v0
    v_readfirstlane_b32 s53, v1
    s_and_b32 s50, s2, 7
    s_lshr_b32 s51, s2, 3
    v_lshlrev_b32 v3, 4, v2
    s_mul_i32 s54, s51, 9363
    s_lshr_b32 s54, s54, 16
    s_mul_i32 s55, s54, 7
    s_sub_u32 s55, s51, s55
    s_lshl_b32 s56, s50, 2
    s_add_u32 s54, s54, s56
    s_lshl_b32 s56, s53, 14
    s_lshl_b32 s57, s54, 16
    s_add_u32 s57, s57, s56
    s_lshl_b32 s58, s55, 16
    s_add_u32 s58, s58, s56""")
    k.e(f"""s_add_u32 s57, s57, {OF}
    s_add_u32 s58, s58, {WOF}
    s_mul_i32 s66, s54, 7
    s_add_u32 s66, s66, s55
    s_lshl_b32 s66, s66, 14
    s_lshl_b32 s67, s53, 12
    s_add_u32 s66, s66, s67
    s_add_u32 s66, s66, {PART}
    s_waitcnt lgkmcnt(0)""")
    srd(k, sWS, "s20", "s21", WS_SIZE)
    srd(k, sOut, "s4", "s5", 1835008)
    for b in range(8):
        R = RG + 16*b
        off = (b & 1) * 2048
        k.vmem(f"buffer_load_dwordx4 {vr(R,4)}, v3, s[{sWS}:{sWS+3}], s58 offen offset:{off}", b)
        k.vmem(f"buffer_load_dwordx4 {vr(R+4,4)}, v3, s[{sWS}:{sWS+3}], s58 offen offset:{off+1024}", b)
        k.vmem(f"buffer_load_dwordx4 {vr(R+8,4)}, v3, s[{sWS}:{sWS+3}], s57 offen offset:{off}", b)
        k.vmem(f"buffer_load_dwordx4 {vr(R+12,4)}, v3, s[{sWS}:{sWS+3}], s57 offen offset:{off+1024}", b)
        if b & 1: k.e("s_add_u32 s57, s57, 4096\ns_add_u32 s58, s58, 4096")
    for q in range(4):
        k.vmem(f"buffer_load_dwordx4 {vr(PR+4*q,4)}, v3, s[{sWS}:{sWS+3}], s66 offen offset:{q*1024}", "p")
    k.e(f"""v_and_b32 v4, 31, v2
    s_lshl_b32 s59, s54, 6
    s_lshr_b32 s60, s53, 1
    s_lshl_b32 s60, s60, 5
    s_add_u32 s59, s59, s60
    v_add_u32 v4, s59, v4
    v_mul_u32_u24 v4, 896, v4
    v_lshrrev_b32 v5, 5, v2
    v_lshl_add_u32 v6, v5, 6, v4
    s_lshl_b32 s59, s55, 7
    s_and_b32 s60, s53, 1
    s_lshl_b32 s60, s60, 5
    s_add_u32 s59, s59, s60""")
    stamp(k, 1)
    for b in range(8):
        R = RG + 16*b
        k.wait_vm(b)
        if b == 0: stamp(k, 2)
        for u in range(2):
            for e in range(2):
                a = ACC + 16*(2*u + e)
                k.e(f"{MFMA} {vr(a,16)}, {vr(R+4*e,4)}, {vr(R+8+4*u,4)}, {'0' if b == 0 else vr(a,16)}")
    k.e(f"""s_lshl_b32 s66, s53, 14
    v_add_u32 v4, s66, v3
    s_nop 7
    s_nop 1""")
    stamp(k, 4)
    gemm_exchange(k, ACC, 0, 4, None, None)
    k.e(f"""s_lshr_b32 s66, s53, 1
    s_lshl_b32 s66, s66, 13
    s_and_b32 s67, s53, 1
    s_lshl_b32 s67, s67, 11
    s_add_u32 s66, s66, s67
    v_add_u32 v4, s66, v3
    s_waitcnt lgkmcnt(0)
    s_barrier""")
    for w in range(4):
        for e in range(2):
            for q in range(2):
                k.e(f"ds_read_b128 {vr(ACC+16*w+8*e+4*q,4)}, v4 offset:{w*16384+e*4096+q*1024}")
    k.e("s_waitcnt vmcnt(0) lgkmcnt(0)")
    for i in range(16):
        k.e(f"v_add_f32 v{ACC+i}, v{ACC+i}, v{PR+i}\nv_add_f32 v{ACC+16+i}, v{ACC+16+i}, v{ACC+32+i}\nv_add_f32 v{ACC+i}, v{ACC+i}, v{ACC+48+i}")
    for i in range(16):
        k.e(f"v_add_f32 v{ACC+i}, v{ACC+i}, v{ACC+16+i}")
    for i in range(8):
        k.e(f"v_cvt_pk_bf16_f32 v{RG+i}, v{ACC+i}, v{ACC+8+i}")
    k.e(f"buffer_store_dwordx4 {vr(RG,4)}, v6, s[{sOut}:{sOut+3}], s59 offen")
    k.e(f"buffer_store_dwordx4 {vr(RG+4,4)}, v6, s[{sOut}:{sOut+3}], s59 offen offset:16")
    if INSTR: k.e("s_waitcnt vmcnt(0)")
    stamp(k, 5); cstamp(k, 7); stamp_out(k, 2, sWS, 53)
    k.label("L3_end")
    k.e("s_endpgm")
    return k, 224, 0, 65536

def main(out):
    ks = [gen_k1(), gen_k2(), gen_k3()]
    grids = [(256, 256), (256, 512), (224, 256)]
    hdr = "; parallel_sum(mha_block, geglu_ffn): 3-launch pipeline (generated by gen/gen.py)\n"
    for (k, v, a, lds), (g, b) in zip(ks, grids):
        hdr += f"; @launch kernel={k.name} grid=({g},1,1) block=({b},1,1) lds={lds}\n"
    txt = hdr + '.amdgcn_target "amdgcn-amd-amdhsa--gfx950"\n.text\n'
    descs = ""
    for k, v, a, lds in ks:
        body, desc = kernel_text(k, v, a)
        txt += body; descs += desc
        print(k.name, end=": ")
        hazard.check(k.text())
    txt += '.section .rodata,"a"\n' + descs
    open(out, "w").write(txt)

if __name__ == "__main__":
    if "--instr" in sys.argv:
        sys.argv.remove("--instr"); INSTR = True
    main(sys.argv[1] if len(sys.argv) > 1 else "parallel_sum__mha_block__geglu_ffn__prompt.s")
```

```python
import math, sys
from asmlib import *
import hazard

QF = 0
HF = 0x600000
WDF = 0xD00000
WOF = 0xE88000
OF = 0x1000000
PART = 0x1200000
WS_SIZE = 0x1680000
SRD3 = "0x00020000"
CQ = math.log2(math.e) / math.sqrt(28.0)
GK1 = -2.0 * math.log2(math.e) * math.sqrt(2.0 / math.pi)
GK2 = GK1 * 0.044715
MFMA = "v_mfma_f32_32x32x16_bf16"

STAMP = 0x1580000
INSTR = False
import os
ABL = set(os.environ.get('ABL', '').split(','))
def stamp(k, i):
    if not INSTR: return
    k.e(f"s_memrealtime s[96:97]\ns_memtime s[98:99]\ns_waitcnt lgkmcnt(0)\nv_writelane_b32 v{k.svreg}, s96, {i}\nv_writelane_b32 v{k.svreg}, s98, {16+i}")
    k.lg = []
def cstamp(k, i):
    return
    k.e(f"s_memtime s[96:97]\ns_waitcnt lgkmcnt(0)\nv_writelane_b32 v{k.svreg}, s96, {i}")
    k.lg = []
def stamp_out(k, kidx, sws, swave):
    if not INSTR: return
    k.e(f"""s_lshl_b32 s98, s2, 3
    s_add_u32 s98, s98, s{swave}
    s_lshl_b32 s98, s98, 7
    s_add_u32 s98, s98, {STAMP + kidx * 262144}
    v_mbcnt_lo_u32_b32 v{k.svreg+1}, -1, 0
    v_mbcnt_hi_u32_b32 v{k.svreg+1}, -1, v{k.svreg+1}
    v_lshlrev_b32 v{k.svreg+1}, 2, v{k.svreg+1}
    s_mov_b64 exec, 0xffffffff
    buffer_store_dword v{k.svreg}, v{k.svreg+1}, s[{sws}:{sws+3}], s98 offen""")
    if "dbgout" in ABL and kidx == int(os.environ.get("DBGK", "2")):
        lab = f"Ldbg{len(k.lines)}"
        dw = int(os.environ.get("DBGW", "800"))
        tab = eval(os.environ.get("DBGTAB", "[(0,0),(0,1),(0,8),(0,3),(0,4),(0,5),(1,0),(1,2),(1,3),(1,4),(1,5),(2,0),(2,2),(2,4),(2,5)]"))
        k.e(f"""s_lshl_b32 s98, s2, 3
        s_add_u32 s98, s98, s{swave}
        s_cmp_lg_u32 s98, {dw}
        s_cbranch_scc1 {lab}
        s_load_dwordx2 s[96:97], s[0:1], 64
        s_waitcnt vmcnt(0) lgkmcnt(0)
        s_mov_b32 s98, 64
        s_mov_b32 s99, {SRD3}
        v_mov_b32 v{k.svreg}, 0""")
        for n, (kk, si) in enumerate(tab):
            k.e(f"s_mov_b32 s100, {STAMP + kk*262144 + dw*128 + si*4}\nv_writelane_b32 v{k.svreg}, s100, {n}")
        k.e(f"""buffer_load_dword v{k.svreg}, v{k.svreg}, s[{sws}:{sws+3}], 0 offen sc1
        s_waitcnt vmcnt(0)
        v_readlane_b32 s100, v{k.svreg}, 0
        s_nop 4
        v_subrev_u32 v{k.svreg}, s100, v{k.svreg}
        buffer_store_dword v{k.svreg}, v{k.svreg+1}, s[96:99], 0 offen""")
        k.label(lab)

def srd(k, d, lo, hi, size):
    k.e(f"s_mov_b32 s{d}, {lo}\ns_mov_b32 s{d+1}, {hi}\ns_mov_b32 s{d+2}, {size}\ns_mov_b32 s{d+3}, {SRD3}")

def gen_k1():
    k = K("k1_kernel")
    sX, sG, sU, sQ, sWS, sT = 24, 28, 32, 36, 40, 44
    CG, RB, W = 50, 51, 53
    X0, ACC0 = 32, 144
    AACC, AW = 0, 48
    NW = 8
    VADDR = 16
    vG, vU, vQ, vL16 = 26, 27, 28, 29
    STG = 20480
    NSLOT = 7
    k.svreg = 14
    if INSTR: k.e("v_mov_b32 v14, 0")
    k.e("s_cmp_ge_u32 s2, 256\ns_cbranch_scc1 L1_end")
    stamp(k, 0); cstamp(k, 6)
    k.e("s_load_dwordx16 s[4:19], s[0:1], 0\ns_load_dwordx2 s[20:21], s[0:1], 72")
    k.e(f"""s_and_b32 s{CG}, s2, 7
    s_lshr_b32 s{RB}, s2, 3
    s_and_b32 s52, s{RB}, 1
    s_lshl_b32 s{CG}, s{CG}, 1
    s_add_u32 s{CG}, s{CG}, s52
    s_lshr_b32 s{RB}, s{RB}, 1
    v_lshrrev_b32 v1, 6, v0
    v_and_b32 v2, 63, v0
    v_readfirstlane_b32 s{W}, v1
    v_and_b32 v3, 31, v2
    v_lshrrev_b32 v4, 5, v2""")
    k.e(f"""s_lshl_b32 s54, s{RB}, 2
    s_add_u32 s54, s54, s{W}
    s_lshl_b32 s55, s54, 5
    v_add_u32 v5, s55, v3
    v_mul_u32_u24 v5, 896, v5
    v_lshl_add_u32 v5, v4, 4, v5
    v_lshlrev_b32 v{vL16}, 4, v2""")
    k.e(f"""s_sub_u32 s56, s{RB}, 14
    s_cmp_lt_u32 s{RB}, 14
    s_cselect_b32 s56, s{RB}, s56
    s_lshl_b32 s57, s56, 6""")
    k.e(f"""s_sub_u32 s65, s{CG}, 14
    s_mul_i32 s65, s65, 560
    s_add_u32 s65, s65, 1568
    s_add_u32 s66, s65, 256
    s_add_u32 s67, s65, 448
    s_lshl_b32 s68, s{CG}, 8
    s_mul_i32 s69, s{CG}, 112
    s_cmp_lt_u32 s{CG}, 14
    s_movk_i32 s58, 2688
    s_cselect_b32 s58, 3584, s58
    s_cselect_b32 s59, s68, s65
    s_cselect_b32 s60, s68, s66
    s_cselect_b32 s61, s69, s67
    s_cselect_b32 s62, 32, 56
    s_cselect_b32 s63, 256, 32
    s_cselect_b32 s64, 1, 0""")
    k.e("s_waitcnt lgkmcnt(0)")
    stamp(k, 1)
    srd(k, sX, "s4", "s5", 1835008)
    for i in range(14):
        k.vmem(f"buffer_load_dwordx4 {vr(X0+8*i,4)}, v5, s[{sX}:{sX+3}], s57 offen", "x")
        k.vmem(f"buffer_load_dwordx4 {vr(X0+8*i+4,4)}, v5, s[{sX}:{sX+3}], s57 offen offset:32", "x")
        if i < 13:
            k.e("s_add_u32 s57, s57, 64\ns_cmp_eq_u32 s57, 896\ns_cselect_b32 s57, 0, s57")
    k.e(f"""s_cmp_lt_u32 s{CG}, 14
    s_cselect_b32 s{sG}, s12, s6
    s_cselect_b32 s{sG+1}, s13, s7
    s_mov_b32 s{sG+2}, 1204224
    s_cselect_b32 s{sG+2}, 1605632, s{sG+2}
    s_mov_b32 s{sG+3}, {SRD3}
    s_cselect_b32 s{sU}, s14, s6
    s_cselect_b32 s{sU+1}, s15, s7
    s_mov_b32 s{sU+2}, s{sG+2}
    s_mov_b32 s{sU+3}, {SRD3}""")
    srd(k, sQ, "s6", "s7", 1204224)
    srd(k, sWS, "s20", "s21", WS_SIZE)
    k.e(f"""s_lshl_b32 s65, s{W}, 3
    v_lshrrev_b32 v6, 4, v2
    v_and_b32 v7, 15, v2
    v_add_u32 v8, s65, v6
    v_mul_lo_u32 v8, v8, s58
    v_lshlrev_b32 v9, 2, v6
    v_xor_b32 v10, v7, v9
    v_lshl_add_u32 v{vG}, v10, 4, v8
    v_add_u32 v{vG}, s59, v{vG}
    s_lshl_b32 s66, s64, 1
    v_xor_b32 v10, s66, v10
    v_lshl_add_u32 v{vU}, v10, 4, v8
    v_add_u32 v{vU}, s60, v{vU}
    v_lshrrev_b32 v6, 3, v2
    v_and_b32 v7, 7, v2
    v_add_u32 v8, s65, v6
    v_mul_u32_u24 v8, 2688, v8
    v_and_b32 v9, 2, v6
    v_lshlrev_b32 v9, 1, v9
    v_xor_b32 v10, v7, v9
    v_lshl_add_u32 v{vQ}, v10, 4, v8
    v_add_u32 v{vQ}, s61, v{vQ}
    s_mul_i32 s70, s{W}, 5120
    s_lshl_b32 s71, s58, 5
    s_lshl_b32 s72, s58, 2""")
    def dma_stage(i):
        slot = (i % NSLOT) * STG
        k.e(f"""s_mul_i32 s73, s56, s71
        s_add_u32 s74, s73, s72
        s_mul_i32 s75, s56, 86016
        s_add_u32 m0, s70, {slot}""")
        k.e("s_add_u32 s56, s56, 1")
        k.vmem(f"buffer_load_dwordx4 v{vG}, s[{sG}:{sG+3}], s73 offen lds", ("st", i))
        k.e(f"s_add_u32 m0, s70, {slot+1024}\ns_cmp_eq_u32 s56, 14")
        k.vmem(f"buffer_load_dwordx4 v{vG}, s[{sG}:{sG+3}], s74 offen lds", ("st", i))
        k.e(f"s_cselect_b32 s56, 0, s56\ns_add_u32 m0, s70, {slot+2048}\ns_nop 0")
        k.vmem(f"buffer_load_dwordx4 v{vU}, s[{sU}:{sU+3}], s73 offen lds", ("st", i))
        k.e(f"s_add_u32 m0, s70, {slot+3072}\ns_nop 0")
        k.vmem(f"buffer_load_dwordx4 v{vU}, s[{sU}:{sU+3}], s74 offen lds", ("st", i))
        k.e(f"s_add_u32 m0, s70, {slot+4096}\ns_nop 0")
        k.vmem(f"buffer_load_dwordx4 v{vQ}, s[{sQ}:{sQ+3}], s75 offen lds", ("st", i))
    for i in range(3):
        dma_stage(i)
    TL = ACC0 + 96
    k.e(f"""s_lshl_b32 s76, s2, 2
    s_add_u32 s76, s76, s{W}
    s_sub_u32 s77, s76, 784
    s_cmp_lt_u32 s76, 784
    s_cselect_b32 s77, s76, s77
    s_cselect_b32 s{sT}, s16, s8
    s_cselect_b32 s{sT+1}, s17, s9
    s_mov_b32 s{sT+2}, 401408
    s_cselect_b32 s{sT+2}, 1605632, s{sT+2}
    s_mov_b32 s{sT+3}, {SRD3}
    s_mul_i32 s78, s77, 9363
    s_lshr_b32 s78, s78, 16
    s_mul_i32 s79, s78, 7
    s_sub_u32 s79, s77, s79
    s_lshl_b32 s80, s78, 4
    s_lshr_b32 s81, s78, 1
    s_mul_i32 s81, s81, 28
    s_and_b32 s82, s78, 1
    s_lshl_b32 s83, s82, 4
    s_add_u32 s81, s81, s83
    s_mul_i32 s84, s79, 229376
    s_add_u32 s84, s84, {WDF}
    s_lshl_b32 s85, s79, 16
    s_add_u32 s85, s85, {WOF}
    s_cmp_lt_u32 s76, 784
    s_cselect_b32 s80, s80, s81
    s_cselect_b32 s84, s84, s85
    s_cselect_b32 s82, 0, s82
    s_lshl_b32 s85, s78, 11
    s_add_u32 s84, s84, s85
    s_cmp_lt_u32 s76, 1008
    s_cselect_b32 s84, s84, 0x7ff00000
    s_mul_i32 s80, s80, 896
    s_lshl_b32 s85, s79, 7
    s_add_u32 s80, s80, s85
    s_lshl_b32 s82, s82, 24""")
    k.e(f"""v_bfe_u32 v6, v3, 2, 1
    v_lshlrev_b32 v6, 4, v6
    v_lshrrev_b32 v7, 3, v3
    v_lshl_add_u32 v6, v7, 2, v6
    v_and_b32 v7, 3, v3
    v_add_u32 v6, v6, v7
    v_lshlrev_b32 v6, 2, v6
    v_mul_u32_u24 v7, 3584, v4
    v_add_u32 v6, v6, v7
    v_mul_lo_u32 v7, v4, s82
    v_add_u32 v7, v7, v6
    v_add_u32 v7, 7168, v7""")
    for j in range(8):
        k.vmem(f"buffer_load_dword v{TL+j}, v{6 if j < 4 else 7}, s[{sT}:{sT+3}], s80 offen offset:{(j&3)*896}", "T")
    for i in range(3, 5):
        dma_stage(i)
    k.e(f"""v_bfe_u32 v6, v2, 4, 1
    v_bfe_u32 v7, v2, 2, 2
    v_and_b32 v8, 3, v2
    v_mul_lo_u32 v9, v6, s63
    v_lshl_add_u32 v9, v8, 3, v9
    v_mul_u32_u24 v10, 5120, v4
    v_lshl_add_u32 v10, v7, 8, v10""")
    for p in range(8):
        k.e(f"""s_mul_i32 s65, s62, {p}
        v_add_u32 v11, s65, v9
        v_lshrrev_b32 v12, 8, v11
        v_and_b32 v11, 255, v11
        v_and_b32 v13, s64, v12
        v_lshl_add_u32 v13, v7, 1, v13
        v_lshlrev_b32 v13, 5, v13
        v_xor_b32 v11, v11, v13
        v_lshl_add_u32 v11, v12, 11, v11
        v_add_u32 v{VADDR+p}, v11, v10""")
    k.e(f"""v_lshlrev_b32 v9, 5, v6
    v_lshl_add_u32 v9, v8, 3, v9
    v_mul_u32_u24 v10, 5120, v4
    v_lshl_add_u32 v10, v7, 7, v10
    v_add_u32 v10, 4096, v10
    v_and_b32 v13, 2, v7
    v_lshlrev_b32 v13, 5, v13
    v_xor_b32 v11, v9, v13
    v_add_u32 v{VADDR+8}, v11, v10
    v_add_u32 v9, 56, v9
    v_xor_b32 v11, v9, v13
    v_add_u32 v{VADDR+9}, v11, v10""")
    k.e("s_mov_b32 s86, 0x3f803f80\ns_mov_b32 s87, 0x00003f80\ns_mov_b32 s88, 0x3f800000")
    k.e("v_mov_b32 v6, 0\nv_mov_b32 v7, 0\nv_mov_b32 v8, 0\nv_mov_b32 v9, 0")
    stamp(k, 8)
    k.wait_vm("x")
    stamp(k, 2)
    for i in range(112):
        k.e(f"v_dot2c_f32_bf16 v{6+(i&3)}, s86, v{X0+i}")
    for i in range(5, 7):
        dma_stage(i)
    k.e("""v_add_f32 v6, v6, v7
    v_add_f32 v8, v8, v9
    v_add_f32 v6, v6, v8
    v_mov_b32 v7, v6
    s_nop 1
    v_permlane32_swap_b32 v6, v7
    v_add_f32 v6, v6, v7""")
    k.e(f"v_mul_f32 v30, {hex(f2u(-1.0/448))}, v6")
    k.e("v_mov_b32 v6, 0\nv_mov_b32 v7, 0\nv_mov_b32 v8, 0\nv_mov_b32 v9, 0")
    TMP = ACC0
    for b in range(14):
        for i in range(8):
            r = X0 + 8*b + i
            k.e(f"v_dot2_f32_bf16 v{TMP+2*i}, v{r}, s87, v30\nv_dot2_f32_bf16 v{TMP+2*i+1}, v{r}, s88, v30")
        if b > 0:
            for i in range(8):
                r = X0 + 8*(b-1) + i
                k.e(f"v_dot2c_f32_bf16 v{6+(i&3)}, v{r}, v{r}")
        else:
            k.e("s_nop 1")
        for i in range(8):
            k.e(f"v_cvt_pk_bf16_f32 v{X0+8*b+i}, v{TMP+2*i}, v{TMP+2*i+1}")
    for i in range(8):
        r = X0 + 8*13 + i
        k.e(f"v_dot2c_f32_bf16 v{6+(i&3)}, v{r}, v{r}")
    k.wait_vm("T")
    k.e("s_mov_b32 s89, 0x05040100\ns_mov_b32 s90, 0x07060302")
    for d in range(4):
        k.e(f"v_perm_b32 v{TL+8+d}, v{TL+2*d+1}, v{TL+2*d}, s89")
        k.e(f"v_perm_b32 v{TL+12+d}, v{TL+2*d+1}, v{TL+2*d}, s90")
    k.vmem(f"buffer_store_dwordx4 {vr(TL+8,4)}, v{vL16}, s[{sWS}:{sWS+3}], s84 offen", "Ts")
    k.vmem(f"buffer_store_dwordx4 {vr(TL+12,4)}, v{vL16}, s[{sWS}:{sWS+3}], s84 offen offset:1024", "Ts")
    k.e(f"""v_add_f32 v6, v6, v7
    v_add_f32 v8, v8, v9
    v_add_f32 v6, v6, v8
    v_mov_b32 v7, v6
    v_mov_b32 v8, {hex(f2u(1e-5))}
    s_mov_b32 s91, {hex(f2u(1.0/448))}
    v_permlane32_swap_b32 v6, v7
    v_add_f32 v6, v6, v7
    v_fma_f32 v30, v6, s91, v8
    v_rsq_f32 v31, v30""")
    stamp(k, 3)
    def acc(p):
        return vr(ACC0 + 16*p, 16) if p < 7 else ar(AACC + 16*(p-7), 16)
    items = [(st, s2, p) for st in range(14) for s2 in range(2) for p in range(10)]
    D = 6
    cur_base = [0]
    def issue_reads(n):
        st, s2, p = items[n]
        slot = st % NSLOT
        if s2 == 0 and p == 0:
            if "k1nowait" not in ABL:
                k.wait_vm(("st", st))
                k.e("s_barrier")
            if 2 <= st <= 8 and "k1nodma" not in ABL:
                dma_stage(st + 5)
            base = (slot // 3) * 3 * STG
            if base != cur_base[0]:
                delta = base - cur_base[0]
                for q in range(10):
                    if delta > 0: k.e(f"v_add_u32 v{VADDR+q}, {delta}, v{VADDR+q}")
                    else: k.e(f"v_subrev_u32 v{VADDR+q}, {-delta}, v{VADDR+q}")
                cur_base[0] = base
        off = slot * STG - cur_base[0] + s2 * 10240
        h2 = 1024 if p < 8 else 512
        fr = AW + 4 * (n % NW)
        k.ds(f"ds_read_b64_tr_b16 {ar(fr,2)}, v{VADDR+p} offset:{off}", n)
        k.ds(f"ds_read_b64_tr_b16 {ar(fr+2,2)}, v{VADDR+p} offset:{off+h2}", n)
    for n in range(D):
        issue_reads(n)
    for n, (st, s2, p) in enumerate(items):
        k.wait_lg(n)
        ks = 2*st + s2
        c = "0" if ks == 0 else acc(p)
        k.e(f"{MFMA} {acc(p)}, {ar(AW+4*(n%NW),4)}, {vr(X0+4*ks,4)}, {c}")
        if n + D < len(items):
            issue_reads(n + D)
    stamp(k, 4)
    k.e("s_barrier")
    k.e("s_mov_b32 s92, 0\ns_mov_b32 s93, -1")
    k.e("s_nop 7\ns_nop 2")
    for i in range(48):
        k.e(f"v_accvgpr_read_b32 v{X0+i}, a{AACC+i}")
    def accv(p):
        return ACC0 + 16*p if p < 7 else X0 + 16*(p-7)
    TE = X0 + 48
    def qkv_pack(p, sTidx):
        A = accv(p)
        k.e(f"""s_cmp_lt_u32 s{sTidx}, 16
        s_cselect_b32 s65, {hex(f2u(CQ))}, 1.0
        s_cselect_b32 s66, 0, 0x3f80
        v_mul_f32 v6, s65, v31
        v_mov_b32 v8, s66
        v_mov_b32 v7, v6""")
        for i in range(8):
            k.e(f"v_pk_mul_f32 {vr(A+2*i,2)}, {vr(A+2*i,2)}, v[6:7]")
        for i in range(8):
            k.e(f"v_cvt_pk_bf16_f32 v{A+i}, v{A+2*i}, v{A+2*i+1}")
        k.e(f"v_cndmask_b32 v{A+6}, v{A+6}, v8, s[92:93]\nv_cndmask_b32 v{A+7}, v{A+7}, 0, s[92:93]")
    def qkv_store(p, sTidx):
        A = accv(p)
        k.e(f"s_lshl_b32 s65, s{sTidx}, 17\ns_lshl_b32 s66, s54, 11\ns_add_u32 s65, s65, s66")
        k.e(f"buffer_store_dwordx4 {vr(A,4)}, v{vL16}, s[{sWS}:{sWS+3}], s65 offen")
        k.e(f"buffer_store_dwordx4 {vr(A+4,4)}, v{vL16}, s[{sWS}:{sWS+3}], s65 offen offset:1024")
    k.e(f"s_cmp_ge_u32 s{CG}, 14\ns_cbranch_scc1 L1_type2")
    k.e(f"s_lshl_b32 s94, s{CG}, 1")
    qkv_pack(8, 94); qkv_store(8, 94)
    k.e("s_add_u32 s94, s94, 1")
    qkv_pack(9, 94); qkv_store(9, 94)
    k.e(f"""v_mul_f32 v8, {hex(f2u(GK1))}, v31
    v_mul_f32 v10, v31, v31
    v_mul_f32 v10, v10, v31
    v_mul_f32 v10, {hex(f2u(GK2))}, v10
    v_mov_b32 v9, v8
    v_mov_b32 v11, v10
    v_mov_b32 v12, v30
    v_mov_b32 v13, v30
    s_lshr_b32 s65, s54, 1
    s_mul_i32 s65, s65, 229376
    s_and_b32 s66, s54, 1
    s_lshl_b32 s66, s66, 10
    s_add_u32 s65, s65, s66
    s_lshl_b32 s66, s{CG}, 14
    s_add_u32 s65, s65, s66
    s_add_u32 s65, s65, {HF}""")
    for p in range(8):
        A = accv(p)
        T = TE + 16 * (p & 1)
        for i in range(4): k.e(f"v_pk_mul_f32 {vr(T+2*i,2)}, {vr(A+2*i,2)}, {vr(A+2*i,2)}")
        for i in range(4): k.e(f"v_pk_fma_f32 {vr(T+2*i,2)}, {vr(T+2*i,2)}, v[10:11], v[8:9]")
        for i in range(4): k.e(f"v_pk_mul_f32 {vr(T+2*i,2)}, {vr(T+2*i,2)}, {vr(A+2*i,2)}")
        for i in range(8): k.e(f"v_exp_f32 v{T+i}, v{T+i}")
        for i in range(4): k.e(f"v_pk_mul_f32 {vr(A+2*i,2)}, {vr(A+2*i,2)}, {vr(A+8+2*i,2)}")
        for i in range(4): k.e(f"v_pk_fma_f32 {vr(T+2*i,2)}, {vr(T+2*i,2)}, v[12:13], v[12:13]")
        for i in range(8): k.e(f"v_rcp_f32 v{T+i}, v{T+i}")
        k.e("s_nop 0")
        for i in range(4): k.e(f"v_pk_mul_f32 {vr(A+2*i,2)}, {vr(A+2*i,2)}, {vr(T+2*i,2)}")
        for i in range(4): k.e(f"v_cvt_pk_bf16_f32 v{T+8+i}, v{A+2*i}, v{A+2*i+1}")
        k.e(f"buffer_store_dwordx4 {vr(T+8,4)}, v{vL16}, s[{sWS}:{sWS+3}], s65 offen offset:{2048*(p&1)}")
        if p & 1: k.e("s_add_u32 s65, s65, 4096")
    stamp(k, 9)
    if INSTR: k.e("s_waitcnt vmcnt(0)")
    stamp(k, 5); cstamp(k, 7); stamp_out(k, 0, sWS, W)
    k.e("s_endpgm")
    k.label("L1_type2")
    k.e(f"s_sub_u32 s94, s{CG}, 14\ns_mul_i32 s94, s94, 10\ns_add_u32 s94, s94, 28")
    for p in range(10):
        qkv_pack(p, 94)
    k.e(f"""s_mul_i32 s65, s{W}, 20480
    v_lshlrev_b32 v6, 6, v3
    v_lshl_add_u32 v6, v4, 3, v6
    v_add_u32 v6, s65, v6
    v_bfe_u32 v7, v2, 2, 2
    v_lshl_add_u32 v7, v4, 2, v7
    v_lshlrev_b32 v7, 6, v7
    v_bfe_u32 v8, v2, 4, 1
    v_lshl_add_u32 v7, v8, 5, v7
    v_and_b32 v8, 3, v2
    v_lshl_add_u32 v7, v8, 3, v7
    v_add_u32 v7, s65, v7""")
    def vtr_w(p):
        A = accv(p)
        for g in range(4):
            k.e(f"ds_write_b64 v6, {vr(A+2*g,2)} offset:{p*2048+g*16}")
    def vtr_r(p):
        A = accv(p)
        for t in range(2):
            for b in range(2):
                k.e(f"ds_read_b64_tr_b16 {vr(A+4*t+2*b,2)}, v7 offset:{p*2048+(16*t+8*b)*64}")
    for p in range(4, 10): vtr_w(p)
    k.e(f"s_cmp_eq_u32 s{CG}, 14\ns_cbranch_scc1 L1_t2b")
    for p in range(4): vtr_w(p)
    k.e("s_waitcnt lgkmcnt(0)")
    for p in range(4): vtr_r(p)
    k.label("L1_t2b")
    k.e("s_waitcnt lgkmcnt(0)")
    for p in range(4, 10): vtr_r(p)
    k.e("s_waitcnt lgkmcnt(0)")
    for p in range(10):
        qkv_store(p, 94)
        k.e("s_add_u32 s94, s94, 1")
    stamp(k, 9)
    if INSTR: k.e("s_waitcnt vmcnt(0)")
    stamp(k, 5); cstamp(k, 7); stamp_out(k, 0, sWS, W)
    k.label("L1_end")
    k.e("s_endpgm")
    return k, 256, 80, NSLOT * STG

def gemm_exchange(k, ACC, lds_base, vW, vRd, sw):
    for t in range(4):
        for q in range(4):
            k.e(f"ds_write_b128 v{vW}, {vr(ACC+16*t+4*q,4)} offset:{t*4096+q*1024}")

def gen_k2():
    k = K("k2_kernel")
    sK, sV, sWS, sH, sWd, sX = 24, 28, 32, 36, 40, 44
    OX, MX, GX = 0, 65536, 69632
    k.svreg = 230
    if INSTR: k.e("v_mov_b32 v230, 0")
    k.e("s_cmp_ge_u32 s2, 256\ns_cbranch_scc1 L2_end")
    stamp(k, 0); cstamp(k, 6)
    k.e("s_load_dwordx2 s[4:5], s[0:1], 0\ns_load_dwordx2 s[20:21], s[0:1], 72")
    k.e("""v_lshrrev_b32 v1, 6, v0
    v_and_b32 v2, 63, v0
    v_readfirstlane_b32 s53, v1
    s_and_b32 s50, s2, 7
    s_lshr_b32 s51, s2, 3
    v_lshlrev_b32 v3, 4, v2
    s_cmp_ge_u32 s53, 4
    s_cbranch_scc1 L2_gemm""")
    Q0, O0, KR, VR, S0, P0, M0 = 8, 40, 104, 136, 168, 200, 216
    TM = 220
    k.e("""s_setprio 1
    s_lshl_b32 s54, s50, 1
    s_and_b32 s55, s51, 1
    s_add_u32 s54, s54, s55
    s_lshr_b32 s55, s51, 1
    s_lshl_b32 s56, s54, 17
    s_lshl_b32 s57, s53, 15
    s_add_u32 s57, s57, s56
    s_add_u32 s57, s57, 0x200000
    s_lshl_b32 s58, s55, 13
    s_add_u32 s58, s58, s56
    s_waitcnt lgkmcnt(0)""")
    k.e(f"""s_add_u32 s{sK}, s20, s57
    s_addc_u32 s{sK+1}, s21, 0
    s_mov_b32 s{sK+2}, 32768
    s_mov_b32 s{sK+3}, {SRD3}
    s_add_u32 s{sV}, s{sK}, 0x200000
    s_addc_u32 s{sV+1}, s{sK+1}, 0
    s_mov_b32 s{sV+2}, 32768
    s_mov_b32 s{sV+3}, {SRD3}""")
    srd(k, sWS, "s20", "s21", WS_SIZE)
    def ldK(b, off, so):
        k.e(f"buffer_load_dwordx4 {vr(KR+8*b,4)}, v3, s[{sK}:{sK+3}], {so} offen offset:{off}")
        k.e(f"buffer_load_dwordx4 {vr(KR+8*b+4,4)}, v3, s[{sK}:{sK+3}], {so} offen offset:{off+1024}")
    def ldV(b, off, so):
        k.e(f"buffer_load_dwordx4 {vr(VR+8*b,4)}, v3, s[{sV}:{sV+3}], {so} offen offset:{off}")
        k.e(f"buffer_load_dwordx4 {vr(VR+8*b+4,4)}, v3, s[{sV}:{sV+3}], {so} offen offset:{off+1024}")
    k.e("s_add_u32 s59, s58, 4096\ns_mov_b32 s60, 4096")
    ldK(0, 0, "0")
    for qt in range(4):
        so = "s58" if qt < 2 else "s59"
        k.e(f"buffer_load_dwordx4 {vr(Q0+8*qt,4)}, v3, s[{sWS}:{sWS+3}], {so} offen offset:{(qt&1)*2048}")
        k.e(f"buffer_load_dwordx4 {vr(Q0+8*qt+4,4)}, v3, s[{sWS}:{sWS+3}], {so} offen offset:{(qt&1)*2048+1024}")
    ldV(0, 0, "0"); ldK(1, 2048, "0"); ldV(1, 2048, "0"); ldK(2, 0, "s60"); ldV(2, 0, "s60"); ldK(3, 2048, "s60")
    for i in range(64): k.e(f"v_mov_b32 v{O0+i}, 0")
    for i in range(8): k.e(f"v_mov_b32 v{VR+24+i}, 0\nv_mov_b32 v{P0+8+i}, 0")
    k.e("s_mov_b32 s92, 0\ns_mov_b32 s93, -1\ns_mov_b32 s61, 0x42800000\ns_mov_b32 s62, 0xffff0000")
    stamp(k, 1)
    k.e("s_waitcnt vmcnt(12)")
    stamp(k, 2)
    def qk(kb, qt, sb):
        return [f"{MFMA} {vr(S0+16*sb,16)}, {vr(KR+8*kb,4)}, {vr(Q0+8*qt,4)}, 0",
                f"{MFMA} {vr(S0+16*sb,16)}, {vr(KR+8*kb+4,4)}, {vr(Q0+8*qt+4,4)}, {vr(S0+16*sb,16)}"]
    def maxops(sb, d):
        S = S0 + 16*sb
        ops = [f"v_max3_f32 v{d}, v{S}, v{S+1}, v{S+2}", f"v_max3_f32 v{d+1}, v{S+3}, v{S+4}, v{S+5}"]
        for i in range(2):
            ops += [f"v_max3_f32 v{d}, v{d}, v{S+6+4*i}, v{S+7+4*i}", f"v_max3_f32 v{d+1}, v{d+1}, v{S+8+4*i}, v{S+9+4*i}"]
        ops += [f"v_max3_f32 v{d}, v{d}, v{S+14}, v{S+15}", f"v_max_f32 v{d}, v{d}, v{d+1}"]
        return ops
    for qt in range(4):
        for o in qk(0, qt, qt & 1): k.e(o)
        k.e("s_nop 7\ns_nop 3")
        for o in maxops(qt & 1, TM): k.e(o)
        k.e(f"""v_mov_b32 v{TM+1}, v{TM}
        s_nop 1
        v_permlane32_swap_b32 v{TM}, v{TM+1}
        v_max_f32 v{TM}, v{TM}, v{TM+1}
        v_cvt_pk_bf16_f32 v{TM+1}, -v{TM}, 0
        v_lshlrev_b32 v{M0+qt}, 16, v{TM+1}
        v_cndmask_b32 v{Q0+8*qt+6}, v{Q0+8*qt+6}, v{TM+1}, s[92:93]""")
    k.e("s_nop 1")
    for o in qk(0, 0, 0): k.e(o)
    k.e("s_mov_b32 s63, 8192\ns_mov_b32 s64, 6144\ns_mov_b32 s65, 4\ns_nop 7\ns_nop 0")
    stamp(k, 3)
    k.label("L2_loop")
    stubs = []
    for kt in range(4):
        for qt in range(4):
            n = 4*kt + qt
            sb = n & 1
            nkt, nqt = (kt + (qt == 3)) % 4, (qt + 1) % 4
            pkt, pqt = (kt - (qt == 0)) % 4, (qt - 1) % 4
            S = S0 + 16*sb; P = P0 + 8*sb; PP = P0 + 8*(1-sb)
            m = qk(nkt, nqt, 1 - sb)
            pv = [f"{MFMA} {vr(O0+16*pqt,16)}, {vr(VR+8*pkt+4*t,4)}, {vr(PP+4*t,4)}, {vr(O0+16*pqt,16)}" for t in range(2)]
            ex = [f"v_exp_f32 v{S+i}, v{S+i}" for i in range(16)]
            cv = [f"v_cvt_pk_bf16_f32 v{P+i}, v{S+2*i}, v{S+2*i+1}" for i in range(8)]
            mx = maxops(1 - sb, TM)
            if qt == 3: k.e("s_waitcnt vmcnt(10)")
            k.e(m[0])
            if qt == 3:
                ldK(kt, 0, "s63"); k.e("s_add_u32 s63, s63, 2048")
            for o in ex[0:4]: k.e(o)
            k.e(m[1])
            for o in ex[4:8] + cv[0:2]: k.e(o)
            if qt == 1: k.e("s_waitcnt vmcnt(10)")
            k.e(pv[0])
            if qt == 1:
                ldV((kt + 3) % 4, 0, "s64"); k.e("s_add_u32 s64, s64, 2048")
            for o in ex[8:12] + cv[2:4]: k.e(o)
            k.e(pv[1])
            for o in ex[12:16] + cv[4:6] + mx[0:4] + cv[6:8] + mx[4:8]: k.e(o)
            if "k2nocheck" not in ABL:
                k.e(f"v_cmp_lt_f32 vcc, s61, v{TM}")
                k.e(f"s_cbranch_vccnz L2_stub{n}")
            k.label(f"L2_ret{n}")
            stubs.append((n, nqt))
    k.e("s_sub_u32 s65, s65, 1\ns_cmp_lg_u32 s65, 0\ns_cbranch_scc1 L2_loop")
    for t in range(2):
        k.e(f"{MFMA} {vr(O0+48,16)}, {vr(VR+24+4*t,4)}, {vr(P0+8+4*t,4)}, {vr(O0+48,16)}")
    stamp(k, 4)
    k.e(f"""s_lshl_b32 s66, s53, 14
    v_add_u32 v4, s66, v3
    s_lshl_b32 s67, s53, 10
    v_lshlrev_b32 v5, 2, v2
    v_add_u32 v6, s67, v5
    v_add_u32 v6, {MX}, v6""")
    for qt in range(4):
        k.e(f"ds_write_b32 v6, v{M0+qt} offset:{qt*256}")
    k.e("s_nop 3")
    for qt in range(4):
        for q in range(4):
            k.e(f"ds_write_b128 v4, {vr(O0+16*qt+4*q,4)} offset:{qt*4096+q*1024}")
    k.e(f"""s_lshl_b32 s66, s53, 12
    v_add_u32 v4, s66, v3
    s_lshl_b32 s67, s53, 8
    v_add_u32 v6, s67, v5
    v_add_u32 v6, {MX}, v6
    s_waitcnt lgkmcnt(0)
    s_barrier""")
    for w in range(4):
        k.e(f"ds_read_b32 v{M0+w}, v6 offset:{w*1024}")
    for w in range(4):
        for q in range(4):
            k.e(f"ds_read_b128 {vr(O0+16*w+4*q,4)}, v4 offset:{w*16384+q*1024}")
    k.e(f"""s_waitcnt lgkmcnt(15)
    v_min3_f32 v{TM}, v{M0}, v{M0+1}, v{M0+2}
    v_min_f32 v{TM}, v{TM}, v{M0+3}""")
    for w in range(4):
        k.e(f"v_sub_f32 v{M0+w}, v{TM}, v{M0+w}")
    for w in range(4):
        k.e(f"v_exp_f32 v{M0+w}, v{M0+w}")
    k.e("s_waitcnt lgkmcnt(0)")
    for i in range(16): k.e(f"v_mul_f32 v{O0+i}, v{O0+i}, v{M0}")
    for w in range(1, 4):
        for i in range(16): k.e(f"v_fmac_f32 v{O0+i}, v{O0+16*w+i}, v{M0+w}")
    k.e(f"""v_mov_b32 v{TM}, v{O0+12}
    v_mov_b32 v{TM+1}, v{O0+12}
    s_lshl_b32 s66, s55, 2
    s_add_u32 s66, s66, s53
    v_permlane32_swap_b32 v{TM}, v{TM+1}
    v_rcp_f32 v{TM}, v{TM+1}
    s_lshr_b32 s67, s66, 1
    s_lshl_b32 s67, s67, 16
    s_and_b32 s66, s66, 1
    s_lshl_b32 s66, s66, 10
    s_add_u32 s67, s67, s66
    s_lshl_b32 s66, s54, 12
    s_add_u32 s67, s67, s66
    s_add_u32 s67, s67, {OF}""")
    for i in range(16): k.e(f"v_mul_f32 v{O0+i}, v{O0+i}, v{TM}")
    for i in range(8): k.e(f"v_cvt_pk_bf16_f32 v{P0+i}, v{O0+2*i}, v{O0+2*i+1}")
    k.e(f"buffer_store_dwordx4 {vr(P0,4)}, v3, s[{sWS}:{sWS+3}], s67 offen")
    k.e(f"buffer_store_dwordx4 {vr(P0+4,4)}, v3, s[{sWS}:{sWS+3}], s67 offen offset:2048")
    if INSTR: k.e("s_waitcnt vmcnt(0)")
    stamp(k, 5); cstamp(k, 7); stamp_out(k, 1, sWS, 53)
    k.e("s_endpgm")
    for n, nqt in stubs:
        k.label(f"L2_stub{n}")
        k.e(f"s_call_b64 s[70:71], L2_rare{nqt}\ns_branch L2_ret{n}")
    for qt in range(4):
        sb = qt & 1
        S = S0 + 16*sb
        k.label(f"L2_rare{qt}")
        k.e(f"""v_mov_b32 v{TM+1}, v{TM}
        s_nop 1
        v_permlane32_swap_b32 v{TM}, v{TM+1}
        v_max3_f32 v{TM}, v{TM}, v{TM+1}, 0
        v_sub_f32 v{TM}, v{M0+qt}, v{TM}
        v_cvt_pk_bf16_f32 v{TM+1}, v{TM}, 0
        v_lshlrev_b32 v{TM}, 16, v{TM+1}
        v_cndmask_b32 v{Q0+8*qt+6}, v{Q0+8*qt+6}, v{TM+1}, s[92:93]
        v_sub_f32 v{TM+2}, v{TM}, v{M0+qt}
        v_mov_b32 v{M0+qt}, v{TM}
        v_exp_f32 v{TM+3}, v{TM+2}""")
        for i in range(16): k.e(f"v_add_f32 v{S+i}, v{S+i}, v{TM+2}")
        for i in range(16): k.e(f"v_mul_f32 v{O0+16*qt+i}, v{O0+16*qt+i}, v{TM+3}")
        k.e("s_nop 1\ns_setpc_b64 s[70:71]")
    k.label("L2_gemm")
    ACC, RG = 8, 72
    k.e(f"""s_cmp_ge_u32 s51, {0 if "k2nogemm" in ABL else 28}
    s_cbranch_scc1 L2_end
    s_sub_u32 s53, s53, 4
    s_mul_i32 s54, s51, 9363
    s_lshr_b32 s54, s54, 16
    s_mul_i32 s55, s54, 7
    s_sub_u32 s55, s51, s55
    s_lshl_b32 s56, s50, 2
    s_add_u32 s54, s54, s56
    s_mul_i32 s56, s53, 57344
    s_mul_i32 s57, s54, 229376
    s_add_u32 s57, s57, s56
    s_mul_i32 s58, s55, 229376
    s_add_u32 s58, s58, s56""")
    k.e(f"""s_add_u32 s57, s57, {HF}
    s_add_u32 s58, s58, {WDF}
    s_waitcnt lgkmcnt(0)
    s_add_u32 s{sH}, s20, s57
    s_addc_u32 s{sH+1}, s21, 0
    s_mov_b32 s{sH+2}, 57344
    s_mov_b32 s{sH+3}, {SRD3}
    s_add_u32 s{sWd}, s20, s58
    s_addc_u32 s{sWd+1}, s21, 0
    s_mov_b32 s{sWd+2}, 57344
    s_mov_b32 s{sWd+3}, {SRD3}""")
    srd(k, sWS, "s20", "s21", WS_SIZE)
    srd(k, sX, "s4", "s5", 1835008)
    def ldG(b, so, off):
        R = RG + 16*b
        k.e(f"buffer_load_dwordx4 {vr(R,4)}, v3, s[{sWd}:{sWd+3}], {so} offen offset:{off}")
        k.e(f"buffer_load_dwordx4 {vr(R+4,4)}, v3, s[{sWd}:{sWd+3}], {so} offen offset:{off+1024}")
        k.e(f"buffer_load_dwordx4 {vr(R+8,4)}, v3, s[{sH}:{sH+3}], {so} offen offset:{off}")
        k.e(f"buffer_load_dwordx4 {vr(R+12,4)}, v3, s[{sH}:{sH+3}], {so} offen offset:{off+1024}")
    XR = 140
    k.e(f"""v_and_b32 v4, 31, v2
    s_lshl_b32 s59, s54, 6
    s_lshr_b32 s60, s53, 1
    s_lshl_b32 s60, s60, 5
    s_add_u32 s59, s59, s60
    v_add_u32 v4, s59, v4
    v_mul_u32_u24 v4, 896, v4
    v_lshrrev_b32 v5, 5, v2
    v_lshl_add_u32 v4, v5, 6, v4
    s_lshl_b32 s59, s55, 7
    s_and_b32 s60, s53, 1
    s_lshl_b32 s60, s60, 5
    s_add_u32 s59, s59, s60
    buffer_load_dwordx4 {vr(XR,4)}, v4, s[{sX}:{sX+3}], s59 offen
    buffer_load_dwordx4 {vr(XR+4,4)}, v4, s[{sX}:{sX+3}], s59 offen offset:16
    s_mov_b32 s60, 4096""")
    ldG(0, "0", 0); ldG(1, "0", 2048); ldG(2, "s60", 0); ldG(3, "s60", 2048)
    for i in range(64): k.e(f"v_mov_b32 v{ACC+i}, 0")
    k.e("s_mov_b32 s61, 8192\ns_mov_b32 s62, 7")
    stamp(k, 3)
    k.label("L2_gloop")
    for b in range(4):
        R = RG + 16*b
        k.e("s_waitcnt vmcnt(12)")
        for u in range(2):
            for e in range(2):
                a = ACC + 16*(2*u + e)
                k.e(f"{MFMA} {vr(a,16)}, {vr(R+4*e,4)}, {vr(R+8+4*u,4)}, {vr(a,16)}")
        ldG(b, "s61", 0)
        k.e("s_add_u32 s61, s61, 2048")
    k.e("s_sub_u32 s62, s62, 1\ns_cmp_lg_u32 s62, 0\ns_cbranch_scc1 L2_gloop")
    stamp(k, 4)
    k.e(f"""s_lshl_b32 s66, s53, 14
    s_add_u32 s66, s66, {GX}
    v_add_u32 v4, s66, v3
    s_nop 7""")
    gemm_exchange(k, ACC, GX, 4, None, None)
    k.e(f"""s_lshr_b32 s66, s53, 1
    s_lshl_b32 s66, s66, 13
    s_and_b32 s67, s53, 1
    s_lshl_b32 s67, s67, 11
    s_add_u32 s66, s66, s67
    s_add_u32 s66, s66, {GX}
    v_add_u32 v4, s66, v3
    s_waitcnt lgkmcnt(0)
    s_barrier""")
    for w in range(4):
        for e in range(2):
            for q in range(2):
                k.e(f"ds_read_b128 {vr(ACC+16*w+8*e+4*q,4)}, v4 offset:{w*16384+e*4096+q*1024}")
    k.e("s_waitcnt vmcnt(0)")
    for i in range(8):
        k.e(f"v_lshlrev_b32 v{XR+8+i}, 16, v{XR+i}\nv_and_b32 v{XR+16+i}, 0xffff0000, v{XR+i}")
    k.e(f"""s_mul_i32 s66, s54, 7
    s_add_u32 s66, s66, s55
    s_lshl_b32 s66, s66, 14
    s_lshl_b32 s67, s53, 12
    s_add_u32 s66, s66, s67
    s_add_u32 s66, s66, {PART}
    s_waitcnt lgkmcnt(0)""")
    for i in range(16):
        k.e(f"v_add_f32 v{ACC+i}, v{ACC+i}, v{XR+8+i}\nv_add_f32 v{ACC+16+i}, v{ACC+16+i}, v{ACC+32+i}\nv_add_f32 v{ACC+i}, v{ACC+i}, v{ACC+48+i}")
    for i in range(16):
        k.e(f"v_add_f32 v{ACC+i}, v{ACC+i}, v{ACC+16+i}")
    for q in range(4):
        k.e(f"buffer_store_dwordx4 {vr(ACC+4*q,4)}, v3, s[{sWS}:{sWS+3}], s66 offen offset:{q*1024}")
    if INSTR: k.e("s_waitcnt vmcnt(0)\ns_add_u32 s53, s53, 4")
    stamp(k, 5); cstamp(k, 7); stamp_out(k, 1, sWS, 53)
    k.label("L2_end")
    k.e("s_endpgm")
    return k, 256, 0, GX + 65536

def gen_k3():
    k = K("k3_kernel")
    sO, sWo, sWS, sOut = 24, 28, 32, 36
    ACC, RG, PR = 8, 72, 200
    k.svreg = 220
    if INSTR: k.e("v_mov_b32 v220, 0")
    k.e("s_cmp_ge_u32 s2, 224\ns_cbranch_scc1 L3_end")
    stamp(k, 0); cstamp(k, 6)
    k.e("s_load_dwordx2 s[4:5], s[0:1], 56\ns_load_dwordx2 s[20:21], s[0:1], 72")
    k.e("""v_lshrrev_b32 v1, 6, v0
    v_and_b32 v2, 63, v0
    v_readfirstlane_b32 s53, v1
    s_and_b32 s50, s2, 7
    s_lshr_b32 s51, s2, 3
    v_lshlrev_b32 v3, 4, v2
    s_mul_i32 s54, s51, 9363
    s_lshr_b32 s54, s54, 16
    s_mul_i32 s55, s54, 7
    s_sub_u32 s55, s51, s55
    s_lshl_b32 s56, s50, 2
    s_add_u32 s54, s54, s56
    s_lshl_b32 s56, s53, 14
    s_lshl_b32 s57, s54, 16
    s_add_u32 s57, s57, s56
    s_lshl_b32 s58, s55, 16
    s_add_u32 s58, s58, s56""")
    k.e(f"""s_add_u32 s57, s57, {OF}
    s_add_u32 s58, s58, {WOF}
    s_mul_i32 s66, s54, 7
    s_add_u32 s66, s66, s55
    s_lshl_b32 s66, s66, 14
    s_lshl_b32 s67, s53, 12
    s_add_u32 s66, s66, s67
    s_add_u32 s66, s66, {PART}
    s_waitcnt lgkmcnt(0)""")
    srd(k, sWS, "s20", "s21", WS_SIZE)
    srd(k, sOut, "s4", "s5", 1835008)
    for b in range(8):
        R = RG + 16*b
        off = (b & 1) * 2048
        k.vmem(f"buffer_load_dwordx4 {vr(R,4)}, v3, s[{sWS}:{sWS+3}], s58 offen offset:{off}", b)
        k.vmem(f"buffer_load_dwordx4 {vr(R+4,4)}, v3, s[{sWS}:{sWS+3}], s58 offen offset:{off+1024}", b)
        k.vmem(f"buffer_load_dwordx4 {vr(R+8,4)}, v3, s[{sWS}:{sWS+3}], s57 offen offset:{off}", b)
        k.vmem(f"buffer_load_dwordx4 {vr(R+12,4)}, v3, s[{sWS}:{sWS+3}], s57 offen offset:{off+1024}", b)
        if b & 1: k.e("s_add_u32 s57, s57, 4096\ns_add_u32 s58, s58, 4096")
    for q in range(4):
        k.vmem(f"buffer_load_dwordx4 {vr(PR+4*q,4)}, v3, s[{sWS}:{sWS+3}], s66 offen offset:{q*1024}", "p")
    k.e(f"""v_and_b32 v4, 31, v2
    s_lshl_b32 s59, s54, 6
    s_lshr_b32 s60, s53, 1
    s_lshl_b32 s60, s60, 5
    s_add_u32 s59, s59, s60
    v_add_u32 v4, s59, v4
    v_mul_u32_u24 v4, 896, v4
    v_lshrrev_b32 v5, 5, v2
    v_lshl_add_u32 v6, v5, 6, v4
    s_lshl_b32 s59, s55, 7
    s_and_b32 s60, s53, 1
    s_lshl_b32 s60, s60, 5
    s_add_u32 s59, s59, s60""")
    stamp(k, 1)
    for b in range(8):
        R = RG + 16*b
        k.wait_vm(b)
        if b == 0: stamp(k, 2)
        for u in range(2):
            for e in range(2):
                a = ACC + 16*(2*u + e)
                k.e(f"{MFMA} {vr(a,16)}, {vr(R+4*e,4)}, {vr(R+8+4*u,4)}, {'0' if b == 0 else vr(a,16)}")
    k.e(f"""s_lshl_b32 s66, s53, 14
    v_add_u32 v4, s66, v3
    s_nop 7
    s_nop 1""")
    stamp(k, 4)
    gemm_exchange(k, ACC, 0, 4, None, None)
    k.e(f"""s_lshr_b32 s66, s53, 1
    s_lshl_b32 s66, s66, 13
    s_and_b32 s67, s53, 1
    s_lshl_b32 s67, s67, 11
    s_add_u32 s66, s66, s67
    v_add_u32 v4, s66, v3
    s_waitcnt lgkmcnt(0)
    s_barrier""")
    for w in range(4):
        for e in range(2):
            for q in range(2):
                k.e(f"ds_read_b128 {vr(ACC+16*w+8*e+4*q,4)}, v4 offset:{w*16384+e*4096+q*1024}")
    k.e("s_waitcnt vmcnt(0) lgkmcnt(0)")
    for i in range(16):
        k.e(f"v_add_f32 v{ACC+i}, v{ACC+i}, v{PR+i}\nv_add_f32 v{ACC+16+i}, v{ACC+16+i}, v{ACC+32+i}\nv_add_f32 v{ACC+i}, v{ACC+i}, v{ACC+48+i}")
    for i in range(16):
        k.e(f"v_add_f32 v{ACC+i}, v{ACC+i}, v{ACC+16+i}")
    for i in range(8):
        k.e(f"v_cvt_pk_bf16_f32 v{RG+i}, v{ACC+i}, v{ACC+8+i}")
    k.e(f"buffer_store_dwordx4 {vr(RG,4)}, v6, s[{sOut}:{sOut+3}], s59 offen")
    k.e(f"buffer_store_dwordx4 {vr(RG+4,4)}, v6, s[{sOut}:{sOut+3}], s59 offen offset:16")
    if INSTR: k.e("s_waitcnt vmcnt(0)")
    stamp(k, 5); cstamp(k, 7); stamp_out(k, 2, sWS, 53)
    k.label("L3_end")
    k.e("s_endpgm")
    return k, 224, 0, 65536

def main(out):
    ks = [gen_k1(), gen_k2(), gen_k3()]
    grids = [(256, 256), (256, 512), (224, 256)]
    hdr = "; parallel_sum(mha_block, geglu_ffn): 3-launch pipeline (generated by gen/gen.py)\n"
    for (k, v, a, lds), (g, b) in zip(ks, grids):
        hdr += f"; @launch kernel={k.name} grid=({g},1,1) block=({b},1,1) lds={lds}\n"
    txt = hdr + '.amdgcn_target "amdgcn-amd-amdhsa--gfx950"\n.text\n'
    descs = ""
    for k, v, a, lds in ks:
        body, desc = kernel_text(k, v, a)
        txt += body; descs += desc
        print(k.name, end=": ")
        hazard.check(k.text())
    txt += '.section .rodata,"a"\n' + descs
    open(out, "w").write(txt)

if __name__ == "__main__":
    if "--instr" in sys.argv:
        sys.argv.remove("--instr"); INSTR = True
    main(sys.argv[1] if len(sys.argv) > 1 else "parallel_sum__mha_block__geglu_ffn__prompt.s")
```

```python
import mb8
from mb8 import *
import glob, os
for f in glob.glob("mb8_*.s"): os.remove(f)
def streamA(rd=True):
    out = []
    for i in range(28):
        out.append(M(i))
        if rd:
            out += [f"    ds_read_b64_tr_b16 v[{12+4*(i%8)}:{13+4*(i%8)}], v2 offset:{(i%8)*1024}", f"    ds_read_b64_tr_b16 v[{14+4*(i%8)}:{15+4*(i%8)}], v2 offset:{(i%8)*1024+512}"]
            if i % 2 == 0: out.append("    s_waitcnt lgkmcnt(10)")
    return "\n".join(out)
def streamB(ndma, nwr, nv, reg=False):
    out = []
    n = max(ndma, nwr, 1)
    for i in range(n):
        if i < ndma:
            if reg: out.append(f"    s_add_u32 s24, s24, 4096\n    s_and_b32 s24, s24, 0x1fffff\n    buffer_load_dwordx4 v[{100+4*(i%8)}:{103+4*(i%8)}], v250, s[12:15], s24 offen")
            else: out.append(f"    s_add_u32 s24, s24, 4096\n    s_and_b32 s24, s24, 0x1fffff\n    buffer_load_dwordx4 v250, s[12:15], s24 offen lds")
        if i < nwr:
            out.append(f"    ds_write_b128 v251, v[60:63] offset:{(i%4)*1024}")
        out += [f"    v_add_f32 v{200+j%16}, v{220+j%8}, v240" for j in range(nv // n)]
    out.append("    s_waitcnt vmcnt(12) lgkmcnt(0)")
    return "\n".join(out)
def gen2(name, sA, sB):
    gen(name, sA, sB, 1, 0, True)
    s = open(f"mb8_{name}.s").read()
    s = s.replace("L_pj:\n", "L_pj:\n    v_lshlrev_b32 v250, 4, v0\n    v_and_b32 v250, 0xfff, v250\n    s_lshl_b32 s24, s2, 14\n    s_lshl_b32 s25, s31, 12\n    s_add_u32 m0, s25, 8192\n    v_and_b32 v251, 63, v0\n    v_lshlrev_b32 v251, 4, v251\n    v_add_u32 v251, s25, v251\n    v_add_u32 v251, 0xa000, v251\n")
    s = s.replace("lds=8192", "lds=81920")
    open(f"mb8_{name}.s", "w").write(s)
A = streamA()
gen2("w_base", A, streamB(0, 0, 0))
for nd in (4, 7, 12):
    gen2(f"w_dma{nd}", A, streamB(nd, 0, 0))
    gen2(f"w_dma{nd}_v84", A, streamB(nd, 0, 84))
    gen2(f"w_reg{nd}_v84", A, streamB(nd, 0, 84, reg=True))
gen2("w_dma7_v140", A, streamB(7, 0, 140))
gen2("w_wr7_v140", A, streamB(0, 7, 140))
gen2("w_v140", A, streamB(0, 0, 140))
gen2("w_dma7_wr7_v140", A, streamB(7, 7, 140))
gen2("w_nord_dma7_wr7_v140", streamA(False), streamB(7, 7, 140))
gen2("w_nord_dma12_v84", streamA(False), streamB(12, 0, 84))
```

```python
import mb11
from mb11 import *
import glob, os
for f in glob.glob("mb8_*.s"): os.remove(f)
DMA = "    s_add_u32 s24, s24, 4096\n    s_and_b32 s24, s24, 0x1fffff\n    buffer_load_dwordx4 v250, s[12:15], s24 offen lds"
def streamA2(ndma):
    out = []
    for i in range(28):
        out.append(M(i))
        out += [f"    ds_read_b64_tr_b16 v[{12+4*(i%8)}:{13+4*(i%8)}], v2 offset:{(i%8)*1024}", f"    ds_read_b64_tr_b16 v[{14+4*(i%8)}:{15+4*(i%8)}], v2 offset:{(i%8)*1024+512}"]
        if i % 2 == 0: out.append("    s_waitcnt lgkmcnt(10)")
        if ndma and i % (28 // ndma) == 1: out.append(DMA)
    out.append("    s_waitcnt vmcnt(12)")
    return "\n".join(out)
def streamB2(ndma, wr, nv, n=7, order="mix"):
    out = []
    W = {"b128": lambda i: [f"    ds_write_b128 v251, v[60:63] offset:{(i%4)*1024}"],
         "b64": lambda i: [f"    ds_write_b64 v252, v[60:61] offset:{(i%4)*1024}", f"    ds_write_b64 v252, v[62:63] offset:{(i%4)*1024+512}"],
         "b32": lambda i: [f"    ds_write_b32 v253, v{60+j} offset:{(i%4)*1024+256*j}" for j in range(4)],
         "w2st": lambda i: [f"    ds_write2st64_b32 v253, v60, v61 offset0:{(i%4)*4} offset1:{(i%4)*4+1}", f"    ds_write2st64_b32 v253, v62, v63 offset0:{(i%4)*4+2} offset1:{(i%4)*4+3}"],
         "tid": lambda i: [f"    ds_write_addtid_b32 v{60+j} offset:{(i%4)*1024+256*j}" for j in range(4)],
         "none": lambda i: []}[wr]
    V = lambda c: [f"    v_add_f32 v{200+j%16}, v{220+j%8}, v240" for j in range(c)]
    if order == "mix":
        for i in range(n):
            if i < ndma: out.append(DMA)
            out += V(nv // n // 2)
            out += W(i)
            out += V(nv // n // 2)
    elif order == "dmafirst":
        for i in range(n): out += [DMA] + V(nv // n // 2)
        for i in range(n): out += W(i) + V(nv // n // 2)
    elif order == "wrfirst":
        for i in range(n): out += W(i) + V(nv // n // 2)
        for i in range(n): out += [DMA] + V(nv // n // 2)
    out.append("    s_waitcnt vmcnt(12) lgkmcnt(0)")
    return "\n".join(out)
def gen3(name, a, b):
    gen2(name, a, b)
    s = open(f"mb8_{name}.s").read()
    s = s.replace("L_pj:\n", "L_pj:\n    v_and_b32 v252, 63, v0\n    v_lshlrev_b32 v253, 2, v252\n    v_lshlrev_b32 v252, 3, v252\n    v_add_u32 v252, 0xe000, v252\n    v_add_u32 v253, 0xe000, v253\n")
    open(f"mb8_{name}.s", "w").write(s)
for wr in ("b128", "b64", "b32", "w2st", "tid", "none"):
    gen3(f"u_Bdma_{wr}", streamA2(0), streamB2(7, wr, 112))
    gen3(f"u_Adma_{wr}", streamA2(7), streamB2(0, wr, 112))
    gen3(f"u_nodma_{wr}", streamA2(0), streamB2(0, wr, 112))
gen3("u_Bdma_b128_dmafirst", streamA2(0), streamB2(7, "b128", 112, order="dmafirst"))
gen3("u_Bdma_b128_wrfirst", streamA2(0), streamB2(7, "b128", 112, order="wrfirst"))
```

```python
from mbgen import *
pre = init_regs(4, 250, "0x3c003c00")
def M(i):
    a = 64+16*(i%8)
    return f"    v_mfma_f32_32x32x16_bf16 v[{a}:{a+15}], v[4:7], v[8:11], v[{a}:{a+15}]"
def V(i, kind):
    if kind == "norm":
        j = i % 20
        if j < 8: return f"    v_lshlrev_b32 v{200+j}, 16, v{220+j}" if j % 2 == 0 else f"    v_and_b32 v{200+j}, s30, v{220+j}"
        if j < 16: return f"    v_fma_f32 v{200+j-8}, v{200+j-8}, v240, v241"
        return f"    v_cvt_pk_bf16_f32 v{230+j-16}, v{200+2*(j-16)}, v{201+2*(j-16)}"
    if kind == "cvt": return f"    v_cvt_pk_bf16_f32 v{230+i%8}, v{200+i%8}, v{210+i%8}"
    return f"    v_fma_f32 v{200+i%16}, v{220+i%8}, v240, v241"
def stream(nm, nv, mode, kind, reps=4, rd=False):
    out = []
    R = (lambda i: [f"    ds_read_b64_tr_b16 v[{12+4*(i%6)}:{13+4*(i%6)}], v2", f"    ds_read_b64_tr_b16 v[{14+4*(i%6)}:{15+4*(i%6)}], v2 offset:1024", "    s_waitcnt lgkmcnt(8)"]) if rd else (lambda i: [])
    for r in range(reps):
        if mode == "cluster":
            for i in range(nm): out += [M(r*nm+i)] + R(r*nm+i)
            out += [V(i, kind) for i in range(nv)]
        else:
            per = -(-nv // max(nm, 1))
            vi = 0
            if nm == 0: out += [V(i, kind) for i in range(nv)]
            for i in range(nm):
                out += [M(r*nm+i)] + R(r*nm+i)
                for _ in range(per):
                    if vi < nv: out.append(V(vi, kind)); vi += 1
    return "\n".join(out)
def gen(name, sA, sB, prioA=0, prioB=0, bar=False):
    b = "    s_barrier\n" if bar else ""
    body = f"""    s_cmp_ge_u32 s31, 4
    s_cbranch_scc1 L_B
{b}{sA}
    s_branch L_join
L_B:
{b}{sB}
L_join:"""
    p = pre + f"""
    v_lshrrev_b32 v3, 6, v0
    s_nop 1
    v_readfirstlane_b32 s31, v3
    s_mov_b32 s30, 0xffff0000
    v_and_b32 v2, 63, v0
    v_lshlrev_b32 v2, 3, v2
    s_cmp_ge_u32 s31, 4
    s_cbranch_scc1 L_pb
    s_setprio {prioA}
    s_branch L_pj
L_pb:
    s_setprio {prioB}
L_pj:
"""
    open(f"mb8_{name}.s", "w").write(kernel(body, block=512, grid=256, iters=50, vgpr=256, pre=p, lds=8192))
for kind in ("norm", "cvt"):
    for mode in ("cluster", "inter"):
        for bar in (False, True):
            for (pa, pb) in ((0, 0), (0, 1)):
                gen(f"{kind}_{mode}_bar{int(bar)}_p{pa}{pb}", stream(4, 20, mode, kind, rd=True), stream(3, 20, mode, kind, rd=True), pa, pb, bar)
gen("mfmaA_valuB", stream(7, 0, "cluster", "cvt"), stream(0, 40, "inter", "cvt"), bar=True)
gen("valuA_mfmaB", stream(0, 40, "inter", "cvt"), stream(7, 0, "cluster", "cvt"), bar=True)
gen("mfmaA_valuB_norm", stream(7, 0, "cluster", "cvt"), stream(0, 40, "inter", "norm"), bar=True)
```

```python
import sys
def kernel(body, block=256, grid=256, iters=200, vgpr=256, name="mb_kernel", pre="", lds=0, agpr=0):
    acc = ((vgpr + 3)//4)*4
    return f"""; @launch grid=({grid},1,1) block=({block},1,1) lds={lds}
.amdgcn_target "amdgcn-amd-amdhsa--gfx950"
.text
.globl {name}
.p2align 8
.type {name},@function
{name}:
    s_load_dwordx2 s[4:5], s[0:1], 72
    s_load_dwordx2 s[6:7], s[0:1], 0
    s_waitcnt lgkmcnt(0)
    s_mov_b32 s8, s4
    s_mov_b32 s9, s5
    s_mov_b32 s10, 0x100000
    s_mov_b32 s11, 0x00020000
    s_mov_b32 s12, s6
    s_mov_b32 s13, s7
    s_mov_b32 s14, 0x800000
    s_mov_b32 s15, 0x00020000
    v_lshrrev_b32 v1, 6, v0
    s_lshl_b32 s3, s2, 3
    v_add_u32 v1, s3, v1
    v_lshlrev_b32 v1, 2, v1
    v_lshlrev_b32 v2, 4, v0
{pre}
    s_mov_b32 s20, {iters}
    s_barrier
    s_memtime s[16:17]
    s_waitcnt lgkmcnt(0)
L_loop:
{body}
    s_sub_u32 s20, s20, 1
    s_cmp_lg_u32 s20, 0
    s_cbranch_scc1 L_loop
    s_memtime s[18:19]
    s_waitcnt lgkmcnt(0)
    s_sub_u32 s18, s18, s16
    v_mov_b32 v3, s18
    buffer_store_dword v3, v1, s[8:11], 0 offen
    s_waitcnt vmcnt(0)
    s_endpgm
.section .rodata,"a"
.p2align 6
.amdhsa_kernel {name}
  .amdhsa_next_free_vgpr {vgpr+agpr}
  .amdhsa_next_free_sgpr 102
  .amdhsa_accum_offset {acc}
  .amdhsa_group_segment_fixed_size 0
  .amdhsa_kernarg_size 80
  .amdhsa_user_sgpr_count 2
  .amdhsa_user_sgpr_kernarg_segment_ptr 1
  .amdhsa_system_sgpr_workgroup_id_x 1
.end_amdhsa_kernel
"""
def init_regs(lo, hi, val="0x3f803f80"):
    return "\n".join(f"    v_mov_b32 v{i}, {val}" for i in range(lo, hi))
```

```python
import mb12
from mb12 import *
import glob, os
for f in glob.glob("mb8_*.s"): os.remove(f)
def gen4(name, a, b, pa, pb, swap=False):
    gen3(name, b if swap else a, a if swap else b)
    s = open(f"mb8_{name}.s").read()
    x, y = (pb, pa) if swap else (pa, pb)
    s = s.replace("    s_setprio 1\n    s_branch L_pj", f"    s_setprio {x}\n    s_branch L_pj").replace("L_pb:\n    s_setprio 0", f"L_pb:\n    s_setprio {y}")
    open(f"mb8_{name}.s", "w").write(s)
for wr in ("b128", "tid"):
    for pa, pb in ((0, 0), (0, 1), (1, 0)):
        for swap in (False, True):
            gen4(f"t_{wr}_pM{pa}_pH{pb}_{'Myoung' if swap else 'Mold'}", streamA2(0), streamB2(7, wr, 112), pa, pb, swap)
b = streamB2(7, "b128", 112).replace("    ds_write_b128", "    s_setprio 2\n    ds_write_b128").replace("offset:0\n", "offset:0\n    s_setprio 0\n").replace("offset:1024\n", "offset:1024\n    s_setprio 0\n").replace("offset:2048\n", "offset:2048\n    s_setprio 0\n").replace("offset:3072\n", "offset:3072\n    s_setprio 0\n")
gen4("t_b128_localprio", streamA2(0), b, 1, 0)
```

```python
from mbgen import *
def kern(body, iters, block=256, lds=65536, zero=False):
    pre = []
    for i in range(62):
        if zero: pre.append("\n".join(f"    v_mov_b32 v{4+4*i+j}, 0" for j in range(4)))
        else: pre.append(f"    buffer_load_dwordx4 v[{4+4*i}:{7+4*i}], v2, s[12:15], 0 offen offset:{(i%4)*1024}\n    v_add_u32 v2, 8192, v2\n    s_waitcnt vmcnt(8)")
    pre.append("    s_waitcnt vmcnt(0)\n    v_lshlrev_b32 v2, 4, v0")
    for i in range(8):
        pre.append(f"    ds_write_b128 v2, v[{4+4*i}:{7+4*i}] offset:{i*8192}")
    pre.append("    s_waitcnt lgkmcnt(0)\n    v_and_b32 v3, 63, v0\n    v_lshlrev_b32 v2, 3, v3\n    v_lshlrev_b32 v1, 1, v1")
    k = kernel(body, block=block, grid=256, iters=iters, vgpr=256, pre="\n".join(pre), lds=lds)
    k = k.replace("    s_memtime s[16:17]\n", "    s_memtime s[16:17]\n    s_memrealtime s[26:27]\n")
    k = k.replace("    s_memtime s[18:19]\n", "    s_memtime s[18:19]\n    s_memrealtime s[28:29]\n")
    k = k.replace("    v_mov_b32 v3, s18\n    buffer_store_dword v3, v1, s[8:11], 0 offen", "    s_sub_u32 s28, s28, s26\n    v_mov_b32 v4, s18\n    v_mov_b32 v5, s28\n    buffer_store_dwordx2 v[4:5], v1, s[8:11], 0 offen")
    return k
def m32(i, na=8, nb=1):
    a = 64+16*(i%10)
    return f"    v_mfma_f32_32x32x16_bf16 v[{a}:{a+15}], v[{4+4*(i%na)}:{7+4*(i%na)}], v[{36+4*(i%nb)}:{39+4*(i%nb)}], v[{a}:{a+15}]"
def m16(i, na=8, nb=1):
    a = 64+4*(i%40)
    return f"    v_mfma_f32_16x16x32_bf16 v[{a}:{a+3}], v[{4+4*(i%na)}:{7+4*(i%na)}], v[{36+4*(i%nb)}:{39+4*(i%nb)}], v[{a}:{a+3}]"
B = {}
B["m32"] = "\n".join(m32(i) for i in range(40))
B["m32_b4"] = "\n".join(m32(i, 8, 3) for i in range(40))
B["m16"] = "\n".join(m16(i) for i in range(80))
B["m16_b4"] = "\n".join(m16(i, 8, 3) for i in range(80))
B["m32_tr"] = "\n".join(m32(i) + f"\n    ds_read_b64_tr_b16 v[{4+4*((i+4)%8)}:{5+4*((i+4)%8)}], v2 offset:{(i*1024)%65536}\n    ds_read_b64_tr_b16 v[{6+4*((i+4)%8)}:{7+4*((i+4)%8)}], v2 offset:{(i*1024+512)%65536}\n    s_waitcnt lgkmcnt(6)" for i in range(40))
B["m32_tr_half"] = "\n".join(m32(i) + f"\n    ds_read_b64_tr_b16 v[{4+2*((i+8)%16)}:{5+2*((i+8)%16)}], v2 offset:{(i*512)%65536}\n    s_waitcnt lgkmcnt(6)" for i in range(40))
B["exp"] = "\n".join(f"    v_exp_f32 v{224+i%16}, v{4+i%32}" for i in range(160))
B["fma"] = "\n".join(f"    v_fma_f32 v{224+i%16}, v{4+i%32}, v{40+i%16}, v{64+i%64}" for i in range(320))
def attn(nmax):
    out = []
    for t in range(6):
        e = [f"    v_exp_f32 v{224+j}, v{192+j}" for j in range(16)]
        c = [f"    v_cvt_pk_bf16_f32 v{240+j}, v{224+2*j}, v{225+2*j}" for j in range(8)]
        m = [f"    v_max3_f32 v{248+j%4}, v{192+2*j}, v{193+2*j}, v{230}" for j in range(nmax)]
        for q in range(4):
            a = 64+16*((4*t+q)%8)
            out.append(f"    v_mfma_f32_32x32x16_bf16 v[{a}:{a+15}], v[{4+4*((4*t+q)%8)}:{7+4*((4*t+q)%8)}], v[{36+4*q}:{39+4*q}], v[{a}:{a+15}]")
            out += e[q*4:(q+1)*4] + c[q*2:(q+1)*2] + m[q*nmax//4:(q+1)*nmax//4]
    return "\n".join(out)
B["attn8"] = attn(8)
B["attn0"] = attn(0)
for n, b in B.items():
    for it in (8, 80):
        open(f"mb6_{n}_{it}.s", "w").write(kern(b, it))
open("mb6_m32zero_8.s", "w").write(kern(B["m32"], 8, zero=True))
```

```python
from mbgen import *
import mb6
import glob, os
for f in glob.glob("mb6_*.s"): os.remove(f)
def loads(n, mask, lds=False):
    out = []
    for i in range(n):
        out.append(f"    s_add_u32 s24, s24, 4096\n    s_and_b32 s24, s24, {hex(mask)}")
        if lds: out.append("    buffer_load_dwordx4 v250, s[12:15], s24 offen lds")
        else: out.append(f"    buffer_load_dwordx4 v[{100+4*(i%12)}:{103+4*(i%12)}], v250, s[12:15], s24 offen")
        out.append("    s_waitcnt vmcnt(10)")
    return "\n".join(out)
def gen(name, sA, sB, iters=12):
    body = f"""    s_barrier
    s_cmp_ge_u32 s31, 4
    s_cbranch_scc1 L_B
{sA}
    s_branch L_join
L_B:
{sB}
L_join:"""
    k = mb6.kern(body, iters, block=512)
    k = k.replace("    s_mov_b32 s20,", """    v_lshrrev_b32 v3, 6, v0
    s_nop 1
    v_readfirstlane_b32 s31, v3
    v_lshlrev_b32 v250, 4, v0
    v_and_b32 v250, 0xfff, v250
    s_lshr_b32 s24, s2, 3
    s_mul_i32 s24, s24, 0x2a000
    s_lshl_b32 s25, s31, 12
    s_mov_b32 m0, s25
    s_mov_b32 s20,""", 1)
    open(f"mb6_{name}.s", "w").write(k)
M = "\n".join(mb6.m32(i) for i in range(28))
A6 = mb6.attn(0)
gen("e_mfma", M, "")
gen("e_mfma_ld12_L2", M, loads(12, 0x1fffff))
gen("e_mfma_ld6_L2", M, loads(6, 0x1fffff))
gen("e_mfma_ld12_lds", M, loads(12, 0x1fffff, True))
gen("e_mfma_ld12_8M", M, loads(12, 0x7fffff))
gen("e_ld12_L2", "", loads(12, 0x1fffff))
gen("e_attn", A6, "")
gen("e_attn_ld12_L2", A6, loads(12, 0x1fffff))
gen("e_attn_ld12_8M", A6, loads(12, 0x7fffff))
gen("e_attn_m10", A6, "\n".join(mb6.m32(i) + "\n    s_nop 15\n    s_nop 7" for i in range(10)))
```
